```python
import torch

def _softmax(x, axis=-1):
    return torch.softmax(x, dim=axis)
def _gelu(x):
    return torch.nn.functional.gelu(x, approximate="tanh")
def _silu(x):
    return torch.nn.functional.silu(x)
def _sigmoid(x):
    return torch.sigmoid(x)
def _layernorm(x, axis=-1, eps=1e-5):
    m = x.mean(dim=axis, keepdim=True)
    v = x.var(dim=axis, keepdim=True, unbiased=False)
    return (x - m) / torch.sqrt(v + eps)
def _scatter_add(tgt, idx, src, axis=0):
    return tgt.clone().index_add_(axis, idx, src)
def _segment_sum(src, seg, n):
    out = torch.zeros((n,) + src.shape[1:], dtype=src.dtype)
    return out.index_add_(0, seg, src)
def _pad(x, pw):
    flat = tuple(v for pair in reversed(pw) for v in pair)
    return torch.nn.functional.pad(x, flat)

kernel_name = 'gated_mix__linear_attn_block__linear_attn_block__prompt'

def setup_inputs():

    _w = (lambda a: (lambda t: t.to(torch.bfloat16) if t.is_floating_point() else t)(torch.as_tensor(a)))
    def _A_setup():
        B, S, D = 1, 2048, 512
        return {
            "x": _w((lambda *s: torch.randn(*s, dtype=torch.bfloat16) * 0.05)(B, S, D)),
            "wqkv": _w((lambda *s: torch.randn(*s, dtype=torch.bfloat16) * 0.8)(D, 3 * D)),
            "wo": _w((lambda *s: torch.randn(*s, dtype=torch.bfloat16) * 0.05)(D, D)),
        }
    _A_in = _A_setup()

    def _B_setup():
        B, S, D = 1, 2048, 512
        return {
            "x": _w((lambda *s: torch.randn(*s, dtype=torch.bfloat16) * 0.05)(B, S, D)),
            "wqkv": _w((lambda *s: torch.randn(*s, dtype=torch.bfloat16) * 0.8)(D, 3 * D)),
            "wo": _w((lambda *s: torch.randn(*s, dtype=torch.bfloat16) * 0.05)(D, D)),
        }
    _B_in = _B_setup()

    return {
        "A_x": _A_in["x"],
        "A_wqkv": _A_in["wqkv"],
        "A_wo": _A_in["wo"],
        "B_x": _B_in["x"],
        "B_wqkv": _B_in["wqkv"],
        "B_wo": _B_in["wo"],
        "gate_w": _w((lambda *s: torch.randn(*s, dtype=torch.bfloat16) * 0.05)(512) * 16.0),
    }

def reference(A_x, A_wqkv, A_wo, B_x, B_wqkv, B_wo, gate_w):
    def _A_ref(x, wqkv, wo):
        B, S, D = x.shape
        H = 32; Dh = D // H
        qkv = (lambda x, *d: x.permute(*d))((x @ wqkv).reshape(B, S, 3, H, Dh), 2, 0, 3, 1, 4)
        q, k, v = qkv[0], qkv[1], qkv[2]
        phi = lambda t: torch.where(t > 0, t + 1, torch.exp(t)) + 1e-6
        pq, pk = phi(q), phi(k)
        kv = torch.einsum("bhsd,bhse->bhde", pk, v)
        z = torch.einsum("bhsd->bhd", pk)
        num = torch.einsum("bhqd,bhde->bhqe", pq, kv)
        den = torch.einsum("bhqd,bhd->bhq", pq, z)[..., None] + 1e-6
        o = num / den
        return (lambda x, *d: x.permute(*d))(o, 0, 2, 1, 3).reshape(B, S, D) @ wo

    def _B_ref(x, wqkv, wo):
        B, S, D = x.shape
        H = 32; Dh = D // H
        qkv = (lambda x, *d: x.permute(*d))((x @ wqkv).reshape(B, S, 3, H, Dh), 2, 0, 3, 1, 4)
        q, k, v = qkv[0], qkv[1], qkv[2]
        phi = lambda t: torch.where(t > 0, t + 1, torch.exp(t)) + 1e-6
        pq, pk = phi(q), phi(k)
        kv = torch.einsum("bhsd,bhse->bhde", pk, v)
        z = torch.einsum("bhsd->bhd", pk)
        num = torch.einsum("bhqd,bhde->bhqe", pq, kv)
        den = torch.einsum("bhqd,bhd->bhq", pq, z)[..., None] + 1e-6
        o = num / den
        return (lambda x, *d: x.permute(*d))(o, 0, 2, 1, 3).reshape(B, S, D) @ wo

    x = A_x
    g = _sigmoid((x * gate_w).sum(-1, keepdims=True))
    a = _A_ref(x, A_wqkv, A_wo)
    b = _B_ref(x, B_wqkv, B_wo)
    return g * a + (1 - g) * b
```

```python
NAME = 'gated_mix__linear_attn_block__linear_attn_block__prompt'

HEADER_COMMENT = """; Kernarg layout for this problem (80 bytes, ptrs only, base s[0:1]):
"""

class Asm:
    def __init__(self):
        self.lines = []
        self.lab = 0
    def __call__(self, s):
        for l in s.split('\n'):
            l = l.strip()
            if l:
                self.lines.append(('' if l.endswith(':') else '    ') + l)
    def label(self, p='L'):
        self.lab += 1
        return f'{p}_{self.lab}'
    def text(self):
        return '\n'.join(self.lines) + '\n'

def kernel_file(body, grid, block, lds, vgpr=256, sgpr=102, accum=None, name=NAME + '_kernel'):
    if accum is None:
        accum = min(256, (vgpr + 3) // 4 * 4)
    s = HEADER_COMMENT
    s += f'; @launch grid=({grid},1,1) block=({block},1,1) lds={lds}\n'
    s += '.amdgcn_target "amdgcn-amd-amdhsa--gfx950"\n.text\n'
    s += f'.globl {name}\n.p2align 8\n.type {name},@function\n{name}:\n'
    s += body
    s += f'''.section .rodata,"a"
.p2align 6
.amdhsa_kernel {name}
  .amdhsa_next_free_vgpr {vgpr}
  .amdhsa_next_free_sgpr {sgpr}
  .amdhsa_accum_offset {accum}
  .amdhsa_group_segment_fixed_size 0
  .amdhsa_kernarg_size 80
  .amdhsa_user_sgpr_count 2
  .amdhsa_user_sgpr_kernarg_segment_ptr 1
  .amdhsa_system_sgpr_workgroup_id_x 1
.end_amdhsa_kernel
'''
    return s
```

```python
import sys
from asmlib import *
def gen(segs):
    a = Asm()
    a('''
    s_cmp_ge_u32 s2, 256
    s_cbranch_scc1 L_end
    s_load_dwordx2 s[10:11], s[0:1], 72
    v_lshrrev_b32 v1, 6, v0
    s_nop 0
    v_readfirstlane_b32 s3, v1
    s_mov_b32 s20, 0x3fb8aa3b
    s_mov_b32 s21, 0x3fb8aa3b
    s_waitcnt lgkmcnt(0)
    ''')
    for i in range(8, 80): a(f'v_mov_b32 v{i}, 0.5')
    for rep in range(2):
      for s, (mis, body) in enumerate(segs):
        a('.p2align 3')
        a(f's_memtime s[{40+2*s}:{41+2*s}]')
        if mis: a('s_nop 0')
        a(f'.rept 16\n{body}\n.endr')
      a('.p2align 3')
      a(f's_memtime s[{40+2*len(segs)}:{41+2*len(segs)}]')
      a('s_waitcnt lgkmcnt(0)')
    a('''
    s_cmp_lg_u32 s3, 0
    s_cbranch_scc1 L_end
    s_add_u32 s10, s10, 0x8000000
    s_addc_u32 s11, s11, 0
    s_lshl_b32 s12, s2, 7
    v_mov_b32 v10, s12
    ''')
    for s in range(16):
        a(f'v_mov_b32 v12, s{40+2*s}')
        a(f'v_mov_b32 v13, s{41+2*s}')
        a(f'global_store_dwordx2 v10, v[12:13], s[10:11] offset:{8*s}')
        a('s_nop 1')
    a('''
    s_waitcnt vmcnt(0)
    L_end:
    s_endpgm
    ''')
    return kernel_file(a.text(), 256, 256, 163840, vgpr=128)
def rep8(f): return '\n'.join(f(i) for i in range(8))
segs = [
 (0, rep8(lambda i: f'v_pk_mul_f32 v[{16+2*i}:{17+2*i}], v[{40+2*i}:{41+2*i}], s[20:21]')),
 (1, rep8(lambda i: f'v_pk_mul_f32 v[{16+2*i}:{17+2*i}], v[{40+2*i}:{41+2*i}], s[20:21]')),
 (0, rep8(lambda i: f'v_mul_f32 v{16+i}, s20, v{40+i}')),
 (0, rep8(lambda i: f'v_exp_f32_e64 v{16+i}, v{40+i} clamp')),
 (1, rep8(lambda i: f'v_exp_f32_e64 v{16+i}, v{40+i} clamp')),
 (0, rep8(lambda i: f'v_exp_f32_e64 v{16+i}, v{40+i} clamp\nv_max_f32 v{24+i}, s20, v{48+i}')),
 (0, rep8(lambda i: f'v_exp_f32_e64 v{16+i}, v{40+i} clamp\nv_max_f32_e64 v{24+i}, s20, v{48+i}')),
 (0, rep8(lambda i: f'v_exp_f32_e64 v{16+i}, v{40+i} clamp\nv_max_f32 v{24+i}, s20, v{48+i}\nv_add_f32 v{32+i}, v{56+i}, v{48+i}')),
 (0, rep8(lambda i: f'v_cvt_pk_bf16_f32 v{16+i}, v{40+i}, v{48+i}')),
 (1, rep8(lambda i: f'v_cvt_pk_bf16_f32 v{16+i}, v{40+i}, v{48+i}')),
 (0, rep8(lambda i: f'v_pk_add_f32 v[{16+2*i}:{17+2*i}], v[{40+2*i}:{41+2*i}], v[{60+2*i}:{61+2*i}]')),
 (0, rep8(lambda i: f'v_cndmask_b32_e64 v{16+i}, v{40+i}, v{48+i}, s[20:21]')),
 (0, rep8(lambda i: f'v_max3_u32 v{16+i}, v{40+i}, v{48+i}, v{56+i}')),
 (0, rep8(lambda i: f's_add_u32 s30, s31, 5')),
 (0, rep8(lambda i: f'v_exp_f32_e64 v{16+i}, v{40+i} clamp\nv_pk_add_f32 v[{24+2*i}:{25+2*i}], v[{60+2*i}:{61+2*i}], v[{60+2*i}:{61+2*i}]')),
]
open('valu.s', 'w').write(gen(segs))
```

```python
import sys
from asmlib import *
from mb_valu import gen
M = 'v_mfma_f32_32x32x16_bf16 v[96:111], v[8:11], v[12:15], v[96:111]'
M2 = 'v_mfma_f32_32x32x16_bf16 v[112:127], v[8:11], v[12:15], v[112:127]'
def gap(fill):
    return '\n'.join([M] + fill + [M2] + fill) * 1
def rep4(fill): return '\n'.join(gap(fill) for _ in range(4))
mul = lambda i: f'v_mul_f32 v{16+i}, s20, v{40+i}'
pk = lambda i: f'v_pk_mul_f32 v[{16+2*i}:{17+2*i}], v[{40+2*i}:{41+2*i}], s[20:21]'
pka = lambda i: f'v_pk_add_f32 v[{16+2*i}:{17+2*i}], v[{40+2*i}:{41+2*i}], v[{60+2*i}:{61+2*i}]'
ex = lambda i: f'v_exp_f32_e64 v{16+i}, v{40+i} clamp'
cvt = lambda i: f'v_cvt_pk_bf16_f32 v{16+i}, v{40+i}, v{48+i}'
dpp = lambda i: f'v_add_f32_dpp v{16+i}, v{40+i}, v{40+i} row_ror:4 row_mask:0xf bank_mask:0xf'
cnd = lambda i: f'v_cndmask_b32_e64 v{16+i}, v{40+i}, v{48+i}, s[20:21]'
sets = {
 'A': [('none', []), ('mul4', [mul(i) for i in range(4)]), ('mul6', [mul(i) for i in range(6)]), ('mul7', [mul(i) for i in range(7)]), ('mul8', [mul(i) for i in range(8)]),
       ('pk2', [pk(i) for i in range(2)]), ('pk4', [pk(i) for i in range(4)]), ('pka4', [pka(i) for i in range(4)]), ('ex2', [ex(0), ex(1)]), ('ex3', [ex(0), ex(1), ex(2)]),
       ('ex2mul2', [ex(0), mul(4), ex(1), mul(5)]), ('cvt4', [cvt(i) for i in range(4)]), ('cvt6', [cvt(i) for i in range(6)]), ('dpp4', [dpp(i) for i in range(4)]), ('cnd4', [cnd(i) for i in range(4)])],
 'B': [('salu4', ['s_add_u32 s30, s31, 5'] * 4), ('salu6', ['s_add_u32 s30, s31, 5'] * 6), ('wait4', ['s_waitcnt lgkmcnt(0)'] * 4), ('br', ['s_cbranch_scc1 L_end0']), ('cmpbr', ['v_cmp_eq_u32 vcc, -1, v40', 's_cbranch_vccnz L_end0']),
       ('mul4br', [mul(i) for i in range(4)] + ['s_cbranch_scc1 L_end0']), ('tr2', ['ds_read_b64_tr_b16 v[16:17], v7', 'ds_read_b64_tr_b16 v[18:19], v7 offset:512']),
       ('tr2mul4', ['ds_read_b64_tr_b16 v[30:31], v7', 'ds_read_b64_tr_b16 v[32:33], v7 offset:512'] + [mul(i) for i in range(4)]),
       ('dsw', ['ds_write_b128 v6, v[40:43]']), ('dswmul4', ['ds_write_b128 v6, v[40:43]'] + [mul(i) for i in range(4)]), ('bar', ['s_barrier']),
       ('max3_4', [f'v_max3_u32 v16, v16, v{40+2*i}, v{41+2*i}' for i in range(4)]), ('ex1mul4', [ex(0)] + [mul(i+1) for i in range(4)]), ('pk1mul4', [pk(6)] + [mul(i) for i in range(4)]), ('nop', ['s_nop 7'])],
}
for k, lst in sets.items():
    segs = [(0, rep4(f)) for n, f in lst]
    s = gen(segs)
    s = s.replace('    s_waitcnt lgkmcnt(0)\n    v_mov_b32 v8, 0.5', '    s_waitcnt lgkmcnt(0)\n    v_lshlrev_b32 v6, 4, v0\n    v_lshlrev_b32 v7, 3, v0\n    s_cmp_eq_u32 s3, 99\n    v_mov_b32 v8, 0.5', 1)
    s = s.replace('L_end:\n', 'L_end0:\nL_end:\n')
    s = s.replace('s_add_u32 s30, s31, 5', 's_mov_b32 s30, s31')
    open(f'gap_{k}.s', 'w').write(s)
    print(k, [n for n, f in lst])
```

```python
NAME = 'gated_mix__linear_attn_block__linear_attn_block__prompt'

HEADER_COMMENT = """; Kernarg layout for this problem (80 bytes, ptrs only, base s[0:1]):
"""

class Asm:
    def __init__(self):
        self.lines = []
        self.lab = 0
    def __call__(self, s):
        for l in s.split('\n'):
            l = l.strip()
            if l:
                self.lines.append(('' if l.endswith(':') else '    ') + l)
    def label(self, p='L'):
        self.lab += 1
        return f'{p}_{self.lab}'
    def text(self):
        return '\n'.join(self.lines) + '\n'

def kernel_file(body, grid, block, lds, vgpr=256, sgpr=102, accum=None, name=NAME + '_kernel', pad=-1):
    if accum is None:
        accum = min(256, (vgpr + 3) // 4 * 4)
    s = HEADER_COMMENT
    s += f'; @launch grid=({grid},1,1) block=({block},1,1) lds={lds}\n'
    s += '.amdgcn_target "amdgcn-amd-amdhsa--gfx950"\n.text\n'
    if pad >= 0:
        s += '.p2align 12\n'
        if pad: s += f'.fill {pad//4}, 4, 0xbf810000\n'
    s += f'.globl {name}\n.p2align 8\n.type {name},@function\n{name}:\n'
    s += body
    s += f'''.section .rodata,"a"
.p2align 6
.amdhsa_kernel {name}
  .amdhsa_next_free_vgpr {vgpr}
  .amdhsa_next_free_sgpr {sgpr}
  .amdhsa_accum_offset {accum}
  .amdhsa_group_segment_fixed_size 0
  .amdhsa_kernarg_size 80
  .amdhsa_user_sgpr_count 2
  .amdhsa_user_sgpr_kernarg_segment_ptr 1
  .amdhsa_system_sgpr_workgroup_id_x 1
.end_amdhsa_kernel
'''
    return s
```

```python
import re
REG_RE = re.compile(r'^(-?\|?)([vas])(\d+)\|?$|^(-?\|?)([vas])\[(\d+):(\d+)\]\|?$')

def regs_of(tok):
    tok = tok.strip()
    if tok.startswith('abs(') and tok.endswith(')'):
        tok = tok[4:-1]
    if tok.startswith('-abs(') and tok.endswith(')'):
        tok = tok[5:-1]
    if tok in ('vcc', 'exec', 'm0', 'scc'):
        return {tok}
    if tok in ('vcc_lo', 'vcc_hi'):
        return {'vcc'}
    if tok in ('exec_lo', 'exec_hi'):
        return {'exec'}
    m = REG_RE.match(tok)
    if not m:
        return set()
    if m.group(2):
        return {m.group(2) + m.group(3)}
    return {m.group(5) + str(i) for i in range(int(m.group(6)), int(m.group(7)) + 1)}

def split_ops(s):
    out = []; depth = 0; cur = ''
    for ch in s:
        if ch in '[(':
            depth += 1
        if ch in '])':
            depth -= 1
        if ch == ',' and depth == 0:
            out.append(cur.strip()); cur = ''
        else:
            cur += ch
    if cur.strip():
        out.append(cur.strip())
    return out

TRANS = ('v_exp_f32', 'v_log_f32', 'v_rcp_f32', 'v_rsq_f32', 'v_sqrt_f32', 'v_sin_f32', 'v_cos_f32')

class Ins:
    __slots__ = ('text', 'mn', 'kind', 'w', 'r', 'srcC', 'ab', 'states', 'dpp', 'passes', 'wide_store', 'data', 'lds_dma')

def parse(text):
    t = text.split(';')[0].strip()
    parts = t.split(None, 1)
    mn = parts[0]
    rest = parts[1] if len(parts) > 1 else ''
    ops = split_ops(rest)
    mods = ''
    if ops:
        last = ops[-1].split(None, 1)
        ops[-1] = last[0]
        mods = last[1] if len(last) > 1 else ''
    I = Ins(); I.text = t; I.mn = mn; I.w = set(); I.r = set(); I.srcC = set(); I.ab = set(); I.states = 1
    I.dpp = ('_dpp' in mn) or ('row_' in mods) or ('quad_perm' in mods); I.passes = 0; I.wide_store = False; I.data = set(); I.lds_dma = False
    R = [regs_of(o) for o in ops]
    allr = set().union(*R) if R else set()
    if mn.startswith('v_mfma'):
        I.kind = 'mfma'; I.w = R[0]; I.ab = R[1] | R[2]; I.srcC = R[3]; I.r = I.ab | I.srcC
        I.passes = 8 if '32x32x16' in mn else 4 if '16x16x32' in mn else 16
    elif mn.startswith('v_'):
        I.kind = 'valu'
        if mn.startswith('v_cmp'):
            I.w = R[0]; I.r = set().union(*R[1:])
        elif mn.startswith('v_permlane'):
            I.w = R[0] | R[1]; I.r = R[0] | R[1]
        elif mn.startswith(('v_add_co', 'v_addc_co', 'v_sub_co')):
            I.w = R[0] | R[1]; I.r = set().union(*R[2:])
        elif mn == 'v_nop':
            pass
        else:
            I.w = R[0]; I.r = set().union(*R[1:]) if len(R) > 1 else set()
            if mn.startswith(('v_fmac', 'v_dot2c', 'v_pk_fmac')) or I.dpp:
                I.r |= R[0]
            if mn.startswith('v_cndmask') and len(ops) == 3:
                I.r |= {'vcc'}
    elif mn.startswith('ds_'):
        I.kind = 'ds'
        if mn.startswith(('ds_read', 'ds_bpermute', 'ds_permute', 'ds_swizzle')):
            I.w = R[0]; I.r = set().union(*R[1:])
        else:
            I.r = allr
    elif mn.startswith(('buffer_', 'global_')):
        I.kind = 'vmem'
        toks = (' ' + mods + ' ')
        if ' lds ' in toks or 'load_lds' in mn:
            I.r = allr | {'m0'}; I.lds_dma = True
        elif 'load' in mn:
            I.w = R[0]; I.r = set().union(*R[1:])
        elif mn in ('buffer_wbl2', 'buffer_inv'):
            pass
        else:
            I.r = allr
            if mn.startswith('buffer_'):
                I.data = R[0]
            else:
                I.data = R[1]
            if 'x4' in mn or 'x3' in mn:
                I.wide_store = True
            if 'atomic' in mn and ' sc0 ' in toks:
                I.w = R[0]
    elif mn.startswith('s_'):
        I.kind = 'salu'
        if mn == 's_nop':
            I.states = int(ops[0], 0) + 1
        elif mn.startswith(('s_load', 's_memtime', 's_memrealtime', 's_buffer_load')):
            I.kind = 'smem'; I.w = R[0]; I.r = set().union(*R[1:]) if len(R) > 1 else set()
        elif mn.startswith(('s_cmp', 's_cbranch', 's_branch', 's_waitcnt', 's_barrier', 's_endpgm', 's_sleep', 's_setprio', 's_bitcmp')):
            I.r = allr
        else:
            I.w = R[0] if R else set(); I.r = set().union(*R[1:]) if len(R) > 1 else set()
            if 'saveexec' in mn:
                I.w |= {'exec'}
    else:
        raise ValueError('unknown instr ' + t)
    return I

class Emit:
    def __init__(self):
        self.lines = []
        self.hist = []
        self.vm = []
        self.lg = []
        self.nlab = 0
        self.nops = 0
        self.count = {}
        self.issued = {}
        self.slots = 0
        self.lg_extra = 0
    def label(self, p='L'):
        self.nlab += 1
        return f'{p}{self.nlab}'
    def raw(self, s):
        self.lines.append(s)
    def comment(self, s):
        self.lines.append('    ; ' + s)
    def place(self, lab, reset=True):
        self.lines.append(lab + ':')
    def snapshot(self):
        return (list(self.hist), list(self.vm), list(self.lg))
    def restore(self, s):
        self.hist, self.vm, self.lg = list(s[0]), list(s[1]), list(s[2])
    def _emit_plain(self, text):
        I = parse(text)
        self.lines.append('    ' + text)
        self.hist.append(I)
        if len(self.hist) > 40:
            self.hist = self.hist[-40:]
        self.count[I.kind] = self.count.get(I.kind, 0) + 1
        if I.kind == 'mfma':
            self.slots = 0
        elif I.mn == 's_nop':
            self.slots += (I.states + 3) // 4 if I.states > 4 else 1
        elif I.mn.replace('_e64', '').replace('_e32', '') in TRANS:
            self.slots += 2
        elif I.kind == 'vmem':
            self.slots += 2
        elif I.mn.startswith('ds_write'):
            self.slots += 2
        else:
            self.slots += 1
        return I
    def wait(self, vm=None, lg=None):
        parts = []
        if vm is not None and vm < len(self.vm):
            vm = min(vm, 63)
            parts.append(f'vmcnt({vm})'); self.vm = self.vm[len(self.vm) - vm:] if vm else []
        if lg is not None and lg < len(self.lg):
            if any(x[2] for x in self.lg):
                lg = 0
            lg = min(lg, 15)
            parts.append(f'lgkmcnt({lg})'); self.lg = self.lg[len(self.lg) - lg:] if lg else []
        if parts:
            self._emit_plain('s_waitcnt ' + ' '.join(parts))
    def force_wait(self, text):
        self._emit_plain('s_waitcnt ' + text)
        m = re.search(r'vmcnt\((\d+)\)', text)
        if m:
            n = int(m.group(1)); self.vm = self.vm[len(self.vm) - n:] if n and n < len(self.vm) else ([] if n == 0 else self.vm)
        m = re.search(r'lgkmcnt\((\d+)\)', text)
        if m:
            n = int(m.group(1)); self.lg = self.lg[len(self.lg) - n:] if n and n < len(self.lg) else ([] if n == 0 else self.lg)
    def wait_tag(self, tag, lg=None):
        idx = -1
        for i, (t, _) in enumerate(self.vm):
            if t == tag:
                idx = i
        vm = None
        if idx >= 0:
            vm = len(self.vm) - 1 - idx
        self.wait(vm=vm, lg=lg)
    def _auto_wait(self, I):
        touch = I.r | I.w
        vm = None; lg = None
        for i, (t, d) in enumerate(self.vm):
            if d & touch:
                vm = len(self.vm) - 1 - i
        for i, (t, d, sm) in enumerate(self.lg):
            if d & touch:
                lg = len(self.lg) - 1 - i
        if lg is not None and self.lg_extra:
            lg = max(0, lg - self.lg_extra)
        if vm is not None or lg is not None:
            self.wait(vm=vm, lg=lg)
    def _hazard(self, I):
        need = 0
        dist = 0
        for P in reversed(self.hist):
            req = 0
            vw = {x for x in P.w if x[0] in 'va' and x not in ('vcc',)}
            sw = {x for x in P.w if x[0] == 's' or x == 'vcc'}
            if P.kind == 'mfma':
                big = {2: 5, 4: 8, 8: 12, 16: 20}[P.passes]
                if I.kind == 'mfma':
                    if I.ab & P.w:
                        req = max(req, big)
                    if I.srcC & P.w:
                        if I.srcC == P.w and I.passes == P.passes:
                            pass
                        else:
                            req = max(req, big - 2)
                    elif I.w & P.w:
                        req = max(req, big)
                elif I.kind in ('valu', 'ds', 'vmem'):
                    if (I.r | I.w) & P.w:
                        req = max(req, big)
                    if I.kind == 'valu' and I.w & P.srcC:
                        req = max(req, {2: 1, 4: 3, 8: 7, 16: 15}[P.passes])
            elif P.kind == 'valu':
                if I.kind == 'mfma' and I.r & vw:
                    req = max(req, 2)
                if I.kind == 'valu':
                    if P.mn.replace('_e64', '').replace('_e32', '') in TRANS and I.r & vw:
                        req = max(req, 1)
                    if I.dpp and I.r & vw:
                        req = max(req, 2)
                    if I.mn.startswith('v_permlane') and I.r & vw:
                        req = max(req, 2)
                    if I.mn.startswith(('v_readlane', 'v_readfirstlane')) and I.r & vw:
                        req = max(req, 1)
                    if I.r & sw:
                        req = max(req, 4 if I.mn.startswith(('v_readlane', 'v_writelane')) else 2)
                    if P.mn.startswith('v_dot') and (I.r | I.w) & vw and not (I.mn == P.mn and not ((I.r - I.w) & vw)):
                        req = max(req, 3)
                if P.mn.startswith('v_dot') and I.kind in ('ds', 'vmem', 'mfma') and I.r & vw:
                    req = max(req, 3)
                if I.kind == 'vmem' and I.r & sw:
                    req = max(req, 5)
            elif P.kind == 'salu':
                if 'm0' in P.w and I.lds_dma:
                    req = max(req, 1)
            elif P.kind == 'vmem':
                if P.wide_store and I.w & P.data:
                    req = max(req, 2 if I.kind in ('valu', 'mfma') else 1)
            if req - dist > need:
                need = req - dist
            dist += P.states
            if dist > 24:
                break
        while need > 0:
            n = min(need, 16)
            self._emit_plain(f's_nop {n-1}')
            self.nops += n
            need -= n
    def __call__(self, text, tag=None, count=True):
        for l in text.split('\n'):
            l = l.strip()
            if not l or l.startswith(';'):
                continue
            if l.endswith(':'):
                self.place(l[:-1]); continue
            I = parse(l)
            if I.mn == 's_waitcnt':
                self.force_wait(l.split(None, 1)[1]); continue
            self._auto_wait(I)
            self._hazard(I)
            self._emit_plain(l)
            if I.kind == 'vmem' and count and I.mn not in ('buffer_wbl2', 'buffer_inv'):
                self.vm.append((tag, set(I.w)))
                self.issued[tag] = self.issued.get(tag, 0) + 1
            elif I.kind == 'ds':
                self.lg.append((tag, set(I.w), False))
            elif I.kind == 'smem':
                self.lg.append((tag, set(I.w), True))
    def text(self):
        return '\n'.join(self.lines) + '\n'
```

```python
import sys
from asmlib import *
from emit import Emit

O_OFF = 0
P_OFF = 0x400000
Z_OFF = 0x480000
G_OFF = 0x4a0000
F_OFF = 0x4c0000
F1_OFF = 0x4c8000
SPILL = 0x500000 + 128
WS_BYTES = 0xa00000
STAMP_OFF = 0x8000000
S0, S1, S2 = 0, 32768, 65536
WQ = 98304
CSLOT = [S0, S1, S2, WQ, WQ + 32768, S0, S1, S2]
GWL = WQ + 65536 - 1024
KVSCR = S0
ZSCR = S0 + 8192
GXSCR = S0
FSCR = S0
WOG = [S0 + 16384, S1, S1 + 16384, S2, S2 + 16384, WQ, WQ + 16384, WQ + 32768]
LOG2E = 0x3fb8aa3b
EPS = 0x358637bd
MF, SKIP = 'MF', 'SKIP'

def vr(b, n=1):
    return f'v{b}' if n == 1 else f'v[{b}:{b+n-1}]'
def ar(b, n=1):
    return f'a{b}' if n == 1 else f'a[{b}:{b+n-1}]'
def lines(t):
    return [l.strip() for l in t.split('\n') if l.strip()]

def gen(stamps=0, MAXSPIN=1 << 16, cyc=False, amp=-1, budget=30, gdelay=32, wo_gap=2, gpause=14, wo_max=99,
        oahead=3, ramp_ks=8, look=3, e1_lead=64, midq=34, phi_max=99, out_mod='', rd_pre=999, ost_wait=True, wo_tail=1,
        merge=False, x_nowo=False, per_dma=12, flag_bar=3, nweave=0, x16='', wq_e1=0, e1_step=8, poison_first=False, kv_pace=2, early_fin=True, ws_base=0, tlb=0, rot=12, lag3=0, skip3=False, jitter=0, al=0, x_nopoi=False, tailw=0, gs=4, g0_pos=4, we_from=99, we_to=0, tail_from=28, pre_x=0, pad=4096-0x300, wtouch=0, iwarm=False, x_full=False, pf3=0, zoom=False, wo_stop=64, wo_afterbgx=0):
    e = Emit()
    nst = [0]
    issued = e.issued
    def stamp(z=False):
        if stamps and nst[0] < 13 and (z == zoom or nst[0] == 0):
            i = nst[0]; nst[0] += 1
            e(f'{"s_memtime" if cyc else "s_memrealtime"} s[{70+2*i}:{71+2*i}]')
    def jit(k):
        if not jitter: return
        lab = e.label('L_jit'); l2 = e.label('L_jite')
        e(f'''
        s_memtime s[92:93]
        s_waitcnt lgkmcnt(0)
        s_mul_i32 s94, s2, {37 + 2*k}
        s_add_u32 s94, s94, s92
        s_lshr_b32 s94, s94, 3
        s_and_b32 s94, s94, {jitter}
        s_cmp_lt_u32 s94, {jitter*3//4}
        s_cbranch_scc1 {l2}
        {lab}:
        s_sleep 8
        s_sub_u32 s94, s94, 1
        s_cmp_gt_u32 s94, {jitter*3//4}
        s_cbranch_scc1 {lab}
        {l2}:
        ''')
    def run(x):
        e(x) if isinstance(x, str) else x()
    X, W, WO, WS, OUT, DBG, GW = 's[8:11]', 's[12:15]', 's[16:19]', 's[20:23]', 's[24:27]', 's[28:31]', 's[32:35]'
    s_r, s_c, s_R64, s_C64 = 's36', 's37', 's38', 's39'
    s_xbase, s_wbase, s_F = 's40', 's41', 's42'
    s_xs, s_ws_ = 's43', 's44'
    s_w4k, s_w2k, s_out = 's45', 's46', 's47'
    s_m16, s_l2e, s_eps = 's[48:49]', 's[50:51]', 's52'
    s_P, s_Z, s_O, s_G = 's53', 's54', 's55', 's56'
    s_t, s_t2, s_spin, s_wos, s_O2 = 's57', 's58', 's59', 's60', 's61'
    s_Pg, s_Zg, s_Og, s_Gg = 's62', 's63', 's64', 's65'
    ch, rh = 's66', 's67'
    s_hm, s_rhm = 's[6:7]', 's[96:97]'
    s_rq, s_mask, s_rw, s_ro = 's98', 's99', 's100', 's101'
    vF2a = 0; vZld = 2; vGo = 3; vN = 4
    vX = 8; vW = 12; vL16 = 16; vFa = 17
    vXA = 18; vWA = 30; vGA = 33; vGacc = 36; vGt = 37; vZero = 39; vGW = 40
    accK = 48; accV = 80; Wf = 112
    vO = 128; vOA = 132; vOut = 138; vFw = 139; vSw = 140; vSr = 141; vZw = 142; vZr = 143
    accQ = 144; GA = 176
    PK = 176; VF = 192; D = 208; DZ = 224; ONES = 240
    T = 244; SEL = 252
    vFl = 40; vGv = 42; vGo2 = 43
    vLX = 1 if skip3 else 16
    A0, A1, A2, A3, B0, B1, B2, vGWa = 192, 193, 194, 195, 196, 197, 198, 199

    if rot == 7:
        rotcode = f's_lshr_b32 {s_rq}, s2, 1\n s_add_u32 {s_rq}, {s_rq}, {s_r}\n s_and_b32 {s_rq}, {s_rq}, 3\n s_lshl_b32 {s_rq}, {s_rq}, 1'
    elif rot == 8:
        rotcode = f's_and_b32 {s_rq}, s2, 6\n s_add_u32 {s_rq}, {s_rq}, {s_r}\n s_and_b32 {s_rq}, {s_rq}, 7'
    elif rot == 12:
        rotcode = f's_lshl_b32 {s_rq}, {s_r}, 1\n s_add_u32 {s_rq}, {s_rq}, s2\n s_and_b32 {s_rq}, {s_rq}, 7'
    if lag3:
        rotcode += f'\n s_and_b32 s59, s2, 0xc2\n s_cmp_eq_u32 s59, 0xc0\n s_cselect_b32 s59, {lag3}, 0\n s_sub_u32 {s_rq}, {s_rq}, s59\n s_and_b32 {s_rq}, {s_rq}, 7'
    stamp()
    e(f'''
    s_load_dwordx4 s[4:7], s[0:1], 0
    s_load_dwordx4 s[64:67], s[0:1], 32
    s_load_dwordx4 s[32:35], s[0:1], 48
    s_load_dwordx2 s[16:17], s[0:1], 16
    s_load_dwordx4 s[28:31], s[0:1], 64
    s_memrealtime s[68:69]
    s_cmp_ge_u32 s2, 256
    s_cbranch_scc1 L_end
    v_lshrrev_b32 v{A0}, 6, v0
    s_getpc_b64 s[60:61]
    v_readfirstlane_b32 s3, v{A0}
    s_lshr_b32 s58, s2, 3
    s_lshl_b32 s57, s58, 9
    v_lshl_add_u32 v{B0}, v{A0}, 7, s57
    v_and_b32 v{B2}, 1, v0
    v_lshl_add_u32 v{B0}, v{B2}, 14, v{B0}
    ''')
    e(f'global_load_dword v{B1}, v{B0}, s[60:61]', tag='kv0')
    e(f'''
    v_and_b32 v1, 63, v0
    s_and_b32 s36, s2, 1
    s_lshl_b32 s36, s36, 3
    s_and_b32 s37, s58, 7
    s_add_u32 s36, s36, s37
    v_lshrrev_b32 v{A0}, 3, v1
    v_lshrrev_b32 v{A1}, 4, v1
    v_and_b32 v{A2}, 7, v1
    v_xor_b32 v{A3}, v{A2}, v{A1}
    v_lshlrev_b32 v{A3}, 4, v{A3}
    v_lshl_add_u32 v{vX}, v{A0}, 10, v{A3}
    v_xor_b32 v{B2}, 64, v{vX}
    v_add_u32 v{vX+1}, {8192-1024}, v{B2}
    v_add_u32 v{vX+2}, {2*(8192-1024)}, v{vX}
    v_add_u32 v{vX+3}, {3*(8192-1024)}, v{B2}
    s_lshl_b32 {s_w4k}, s3, 12
    s_lshl_b32 {s_xbase}, {s_r}, 17
    s_lshl_b32 {s_t}, s3, 15
    s_add_u32 {s_xbase}, {s_xbase}, {s_t}
    s_mov_b32 m0, {s_w4k}
    {rotcode}
    s_lshl_b32 s59, {s_rq}, 7
    s_add_u32 {s_xs}, s59, {s_xbase}
    s_mov_b32 s10, 0x200000
    s_mov_b32 s11, 0x20000
    ''')
    e('s_waitcnt lgkmcnt(0)')
    stamp()
    jit(0)
    e('s_mov_b32 s8, s4\n s_mov_b32 s9, s5')
    if wtouch:
        e(f's_bitcmp1_b32 s2, 2\n s_cselect_b32 s12, s64, s6\n s_cselect_b32 s13, s65, s7\n v_mov_b32 v{vZero}, 0')
        e(f'global_load_dword v201, v{vZero}, s[12:13]', tag='tch')
        if wtouch > 1:
            e(f'global_load_dword v202, v{vZero}, s[32:33]', tag='tch')
            e(f'global_load_dword v203, v{vZero}, s[30:31]', tag='tch')
    def adv():
        e(f's_add_u32 {s_rq}, {s_rq}, 1\n s_and_b32 {s_rq}, {s_rq}, 7')
    def x_dma_ops(j):
        sl = CSLOT[j]
        def mk(i):
            def f():
                if j > 0 and i == 0:
                    e(f's_add_u32 m0, {s_w4k}, {sl}\n s_lshl_b32 {s_xs}, {s_rq}, 7\n s_add_u32 {s_xs}, {s_xs}, {s_xbase}')
                e(f'buffer_load_dwordx4 v{vX+i}, {X}, {s_xs} offen offset:{1024*i} lds', tag=f'kv{j}')
                if i == 2 and j > 0:
                    e(f's_mul_i32 {s_ws_}, {s_rq}, {64*3072}\n s_add_u32 {s_ws_}, {s_ws_}, {s_wbase}')
                if i == 3:
                    e(f's_add_u32 m0, {s_w4k}, {sl+16384}')
            return f
        return [mk(i) for i in range(4)]
    def w_dma_ops(j):
        def mk(i):
            def f():
                e(f'buffer_load_dwordx4 v{vW+i}, {W}, {s_ws_} offen offset:{1024*i} lds', tag=f'kv{j}')
                if i == 1: adv()
            return f
        return [mk(i) for i in range(4)]
    def wq_dma_ops(j):
        def f0():
            e(f's_add_u32 m0, {s_w2k}, {j*8192}\n s_mul_i32 {s_ws_}, {s_rq}, {64*3072}\n s_add_u32 {s_ws_}, {s_ws_}, {s_wbase}')
            e(f'buffer_load_dwordx4 v{vW+2}, {W}, {s_ws_} offen lds', tag='wq')
        def f1():
            e(f'buffer_load_dwordx4 v{vW+3}, {W}, {s_ws_} offen offset:1024 lds', tag='wq')
            if j < 7: adv()
        return [f0, f1]
    def wo_dma_ops(g):
        def mk(t):
            def f():
                if t == 0:
                    e(f's_add_u32 m0, {s_w4k}, {WOG[g]}\n s_add_u32 {s_t2}, {s_wos}, {s_rw}')
                if not x_nowo: e(f'buffer_load_dwordx4 v{vO+t}, {WO}, {s_t2} offen offset:{1024*t} lds', tag=f'wo{g}')
                if t == 3 and g < 7:
                    e(f's_add_u32 {s_rw}, {s_rw}, 65536\n s_and_b32 {s_rw}, {s_rw}, 0x7ffff')
            return f
        return [mk(t) for t in range(4)]
    wset = lines(f'''
    s_and_b32 s37, s2, 6
    s_lshl_b32 s37, s37, 1
    s_lshr_b32 s38, s58, 3
    s_add_u32 s37, s37, s38
    v_and_b32 v{A3}, 1, v{A1}
    v_lshlrev_b32 v{A3}, 2, v{A3}
    v_xor_b32 v{A3}, v{A3}, v{A2}
    v_lshlrev_b32 v{A3}, 4, v{A3}
    v_mul_u32_u24 v{B2}, 3072, v{A0}
    v_add_u32 v{vW+2}, v{B2}, v{A3}
    v_add_u32 v{vW+0}, 1024, v{vW+2}
    v_add_u32 v{vW+1}, 24576, v{vW+2}
    v_add_u32 v{vW+3}, 23552, v{vW+2}
    s_and_b32 {s_wbase}, {s_c}, 7
    s_lshl_b32 {s_wbase}, {s_wbase}, 7
    s_mul_i32 {s_t}, s3, {16*3072}
    s_add_u32 {s_wbase}, {s_wbase}, {s_t}
    s_mov_b32 s14, 0x180000
    s_mov_b32 s15, 0x20000
    s_mul_i32 {s_ws_}, {s_rq}, {64*3072}
    s_add_u32 {s_ws_}, {s_ws_}, {s_wbase}
    ''')
    pre = lines(f"""
    s_and_b32 {ch}, s3, 1
    s_lshr_b32 {rh}, s3, 1
    """)
    pre += lines(f'''
    v_lshrrev_b32 v{A1}, 5, v1
    v_and_b32 v{A0}, 31, v1
    s_lshl_b32 {s_t}, {rh}, 13
    v_lshl_add_u32 v{A2}, v{A0}, 7, {s_t}
    v_bfe_u32 v{A3}, v1, 1, 3
    v_xor_b32 v{A3}, v{A3}, v{A1}
    ''')
    for t in range(4):
        pre += [f'v_xor_b32 v{B2}, {2*t}, v{A3}', f'v_lshl_add_u32 v{vXA+3*t}, v{B2}, 4, v{A2}']
    pre += lines(f'''
    v_bfe_u32 v{A3}, v1, 2, 2
    v_lshlrev_b32 v{A2}, 7, v{A3}
    v_bfe_u32 v{A3}, v1, 4, 1
    v_lshl_add_u32 v{A2}, v{A3}, 5, v{A2}
    v_and_b32 v{A3}, 3, v1
    v_lshl_add_u32 v{A2}, v{A3}, 3, v{A2}
    v_bfe_u32 v{A3}, v1, 3, 1
    v_xor_b32 v{B2}, {ch}, v{A3}
    v_lshl_add_u32 v{B2}, v{B2}, 6, v{A2}
    v_lshl_add_u32 v{vWA}, v{A1}, 10, v{B2}
    v_xor_b32 v{B2}, {rh}, v{A3}
    v_lshl_add_u32 v{B2}, v{B2}, 6, v{A2}
    v_lshl_add_u32 v{B2}, v{A1}, 9, v{B2}
    v_add_u32 v{vOA}, {s_t}, v{B2}
    s_lshl_b32 {s_t}, {s_c}, 3
    s_lshl_b32 {s_t2}, s3, 1
    s_add_u32 {s_t}, {s_t}, {s_t2}
    v_add_u32 v{A2}, {s_t}, v{A1}
    v_bfe_u32 v{A3}, v{A2}, 1, 3
    v_bfe_u32 v{B2}, v1, 2, 3
    v_xor_b32 v{A3}, v{A3}, v{B2}
    v_lshlrev_b32 v{A3}, 4, v{A3}
    v_lshl_add_u32 v{A3}, v{A2}, 7, v{A3}
    v_and_b32 v{B2}, 3, v1
    v_lshl_add_u32 v{vGA}, v{B2}, 2, v{A3}
    v_lshlrev_b32 v{vGWa}, 2, v{A0}
    v_add_u32 v{vGWa}, {GWL}, v{vGWa}
    v_mov_b32 v{vGacc}, 0
    ''')
    U0, U1, U2 = A2, A3, B2
    setup = []
    for t in range(4):
        setup += [f'v_add_u32 v{vXA+3*t+1}, 65536, v{vXA+3*t}', f'v_add_u32 v{vXA+3*t+2}, 131072, v{vXA+3*t}']
    setup += lines(f'''
    v_add_u32 v{vWA+1}, 65536, v{vWA}
    v_add_u32 v{vWA+2}, 131072, v{vWA}
    v_add_u32 v{vGA+1}, 65536, v{vGA}
    v_add_u32 v{vGA+2}, 131072, v{vGA}
    s_lshl_b32 {s_w2k}, s3, 11
    s_add_u32 {s_w2k}, {s_w2k}, {WQ}
    s_mov_b32 s18, 0x80000
    s_mov_b32 s19, 0x20000
    s_mov_b32 s22, {WS_BYTES}
    s_mov_b32 s23, 0x20000
    s_mov_b32 s26, 0x200000
    s_mov_b32 s27, 0x20000
    s_lshr_b32 s58, s2, 3
    s_and_b32 s57, s2, 7
    s_lshl_b32 s38, s57, 2
    s_and_b32 s39, s58, 3
    s_add_u32 s38, s38, s39
    s_lshl_b32 {s_ro}, s39, 13
    s_lshl_b32 {s_rw}, s39, 17
    s_lshr_b32 s39, s58, 2
    s_mov_b32 s48, 0xffff0000
    s_mov_b32 s49, 0xffff0000
    s_mov_b32 s50, {LOG2E}
    s_mov_b32 s51, {LOG2E}
    s_mov_b32 {s_eps}, {EPS}
    s_mov_b32 {s_spin}, 0
    s_lshl_b32 {s_t2}, {s_c}, 1
    s_add_u32 {s_t}, {ch}, {s_t2}
    s_lshl_b32 {s_Pg}, {s_t}, 14
    s_add_u32 {s_Pg}, {s_Pg}, {P_OFF}
    s_lshl_b32 {s_P}, {s_r}, 10
    s_add_u32 {s_P}, {s_P}, {s_Pg}
    s_lshl_b32 {s_t2}, {rh}, 13
    s_add_u32 {s_Pg}, {s_Pg}, {s_t2}
    s_lshl_b32 {s_t}, {s_t}, 1
    s_add_u32 {s_t}, {s_t}, {rh}
    s_lshl_b32 {s_Zg}, {s_t}, 11
    s_add_u32 {s_Zg}, {s_Zg}, {Z_OFF}
    s_lshl_b32 {s_Z}, {s_r}, 7
    s_add_u32 {s_Z}, {s_Z}, {s_Zg}
    s_lshl_b32 {s_O}, {s_r}, 1
    s_add_u32 {s_O}, {s_O}, {rh}
    s_lshl_b32 {s_O}, {s_O}, 17
    s_lshl_b32 {s_t}, {s_c}, 12
    s_add_u32 {s_O}, {s_O}, {s_t}
    s_lshl_b32 {s_t}, {ch}, 11
    s_add_u32 {s_O}, {s_O}, {s_t}
    s_add_u32 {s_O2}, {s_O}, 65536
    s_lshl_b32 {s_G}, {s_r}, 13
    s_lshl_b32 {s_t}, {s_c}, 9
    s_add_u32 {s_G}, {s_G}, {s_t}
    s_lshl_b32 {s_t}, s3, 7
    s_add_u32 {s_G}, {s_G}, {s_t}
    s_add_u32 {s_G}, {s_G}, {G_OFF}
    s_lshl_b32 {s_F}, {s_r}, 4
    s_add_u32 {s_F}, {s_F}, {s_c}
    s_lshl_b32 {s_F}, {s_F}, 7
    s_add_u32 {s_F}, {s_F}, {F_OFF}
    s_sub_u32 s7, 0, {rh}
    s_not_b32 s6, s7
    s_mov_b32 s96, s7
    s_mov_b32 s97, s7
    v_mov_b32 v{T}, -1
    v_mov_b32 v{T+1}, -1
    v_mov_b32 v{T+2}, -1
    v_mov_b32 v{T+3}, -1
    v_add_u32 v{vO+1}, {16384-1024}, v{vO}
    v_add_u32 v{vO+2}, {2*(16384-1024)}, v{vO}
    v_add_u32 v{vO+3}, {3*(16384-1024)}, v{vO}
    v_add_u32 v{vOA+1}, 65536, v{vOA}
    v_add_u32 v{vOA+2}, 131072, v{vOA}
    v_xor_b32 v{vOA+3}, 64, v{vOA}
    v_xor_b32 v{vOA+4}, 64, v{vOA+1}
    v_xor_b32 v{vOA+5}, 64, v{vOA+2}
    v_lshlrev_b32 v{vOut}, 10, v{A0}
    v_lshl_add_u32 v{vOut}, v{A1}, 4, v{vOut}
    v_and_b32 v{A2}, 48, v1
    v_and_b32 v{A0}, 15, v1
    v_lshl_add_u32 v{vZld}, v{A0}, 7, v{A2}
    s_lshl_b32 {s_t}, s3, 7
    s_add_u32 {s_t}, {s_t}, {ZSCR}
    v_add_u32 v{vZw}, {s_t}, v{A2}
    v_and_b32 v{A2}, 3, v1
    s_lshl_b32 {s_t}, {ch}, 7
    s_lshl_b32 {s_t2}, {rh}, 6
    s_add_u32 {s_t}, {s_t}, {s_t2}
    s_add_u32 {s_t}, {s_t}, {ZSCR}
    v_lshl_add_u32 v{vZr}, v{A2}, 4, {s_t}
    v_lshlrev_b32 v{vGo}, 6, v{A1}
    v_lshl_add_u32 v{vGo}, v{A2}, 4, v{vGo}
    s_lshl_b32 {s_t}, {s_c}, 7
    s_add_u32 {s_t}, {s_t}, {F1_OFF}
    v_lshl_add_u32 v{vFa}, v{A0}, 11, {s_t}
    s_lshr_b32 {s_t}, {s_R64}, 1
    s_lshl_b32 {s_t}, {s_t}, 11
    s_add_u32 {s_t}, {s_t}, {F_OFF}
    v_lshl_add_u32 v{vF2a}, v{A0}, 7, {s_t}
    v_mov_b32 v{ONES}, 0x3f803f80
    v_mov_b32 v{ONES+1}, 0x3f803f80
    v_mov_b32 v{ONES+2}, 0x3f803f80
    v_mov_b32 v{ONES+3}, 0x3f803f80
    s_lshl_b32 {s_wos}, {s_C64}, 7
    s_lshl_b32 {s_t}, {ch}, 13
    s_add_u32 {s_wos}, {s_wos}, {s_t}
    s_lshl_b32 {s_Og}, {s_R64}, 1
    s_add_u32 {s_Og}, {s_Og}, {ch}
    s_lshl_b32 {s_Gg}, {s_Og}, 11
    s_add_u32 {s_Gg}, {s_Gg}, {G_OFF+48}
    s_lshl_b32 {s_out}, {s_Og}, 15
    s_lshl_b32 {s_Og}, {s_Og}, 16
    s_lshl_b32 {s_t2}, {rh}, 15
    s_add_u32 {s_Og}, {s_Og}, {s_t2}
    s_lshl_b32 {s_t}, {s_C64}, 7
    s_add_u32 {s_out}, {s_out}, {s_t}
    s_lshl_b32 {s_t}, {rh}, 6
    s_add_u32 {s_out}, {s_out}, {s_t}
    v_add_u32 v{vFw}, {s_w4k}, v{vL16}
    s_lshl_b32 {s_t}, s3, 11
    v_add_u32 v{vSw}, {s_t}, v{vL16}
    v_xor_b32 v{vSr}, 4096, v{vSw}
    v_bfe_u32 v{U0}, v1, 3, 1
    v_and_b32 v{U1}, 3, v1
    v_lshl_add_u32 v{U0}, v{U0}, 2, v{U1}
    v_and_b32 v{U1}, 1, v{U0}
    v_lshlrev_b32 v{U1}, 4, v{U1}
    v_mov_b32 v{U2}, 0x3f80
    v_lshlrev_b32 v{U1}, v{U1}, v{U2}
    v_bfe_u32 v{U2}, v1, 2, 1
    v_lshlrev_b32 v{U2}, 5, v{U2}
    v_xor_b32 v{U2}, v{U2}, v1
    v_and_b32 v{U2}, 48, v{U2}
    v_lshrrev_b32 v{U0}, 1, v{U0}
    v_or_b32 v{U0}, v{U0}, v{U2}
    ''')
    for jj in range(4):
        setup += [f'v_cmp_eq_u32 vcc, {jj}, v{U0}', f'v_cndmask_b32 v{SEL+jj}, 0, v{U1}, vcc']
    if skip3:
        setup += [f'v_lshrrev_b32 v{U0}, 3, v1', f'v_add_u32 v{U1}, {SPILL}, v{vL16}', f'v_cmp_eq_u32 vcc, 3, v{U0}', f'v_cndmask_b32 v1, v{vL16}, v{U1}, vcc']
    def o_store(rt, hd, reg, tag='ost'):
        e(f'buffer_store_dwordx4 {vr(reg,4)}, v{vLX}, {WS}, {s_O if rt == 0 else s_O2} offen offset:{1024*hd} sc1', tag=tag)
    def pz_store(preg, zreg, tag):
        e(f's_mov_b64 exec, {s_hm}')
        e(f'buffer_store_dwordx4 {vr(preg,4)}, v{vLX}, {WS}, {s_P} offen sc1', tag=tag)
        e('s_mov_b64 exec, 0xff')
        e(f'buffer_store_dwordx4 {vr(zreg,4)}, v{vL16}, {WS}, {s_Z} offen sc1', tag=tag)
    def g_store():
        e('s_mov_b32 exec_lo, 0xf0000000\n s_mov_b32 exec_hi, 0xf0000000')
        e(f'buffer_store_dwordx4 {vr(vGacc,4)}, v{vGo}, {WS}, {s_G} offen sc1', tag='poi')
        e('s_mov_b64 exec, -1')
    for f in x_dma_ops(0):
        f()
        for _ in range(6):
            if wset: e(wset.pop(0))
    e(f's_cmp_ge_u32 {s_c}, 8\n s_cselect_b32 s12, s64, s6\n s_cselect_b32 s13, s65, s7')
    mid_ = lines(f"""
    v_lshlrev_b32 v{vL16}, 4, v1
    s_mov_b32 s24, s34
    s_mov_b32 s25, s35
    s_mov_b32 s34, 1024
    s_mov_b32 s35, 0x20000
    v_add_u32 v{B0}, s59, v{vL16}
    v_and_b32 v{B0}, 1023, v{B0}
    v_lshl_add_u32 v{vO}, v{A0}, 10, v{A3}
    s_cmp_ge_u32 s3, 2 @ s_cselect_b32 s16, s66, s16 @ s_cselect_b32 s17, s67, s17
    s_add_u32 s20, s30, {ws_base} @ s_addc_u32 s21, s31, 0
    s_mov_b32 s4, s30
    s_mov_b32 s5, s31
    s_mov_b32 s30, 256
    s_mov_b32 s31, 0x20000
    v_mov_b32 v{vZero}, 0
    """)
    def nonce_pub():
        lab = e.label('L_nn')
        e(f"""
        s_or_b32 {s_t}, s2, s3
        s_cmp_lg_u32 {s_t}, 0
        s_cbranch_scc1 {lab}
        s_or_b32 s68, s68, 1
        v_mov_b32 v{vN}, s68
        v_mov_b32 v{vN+1}, s69
        s_mov_b64 exec, 1
        """)
        e(f'buffer_store_dwordx2 {vr(vN,2)}, v{vZero}, {DBG}, 0 offen sc1', count=False)
        e(f's_mov_b64 exec, -1')
        e.place(lab)
    todo = [x.replace('@', '\n') for x in mid_] + [nonce_pub] + pre + setup[:len(setup) - nweave]
    setup = setup[len(setup) - nweave:]
    def some(k):
        for _ in range(k):
            if todo: run(todo.pop(0))
    for f in w_dma_ops(0):
        f(); some(per_dma)
    e(f's_mov_b32 m0, {GWL}')
    some(2)
    e(f'buffer_load_dwordx4 v{B0}, {GW}, 0 offen lds', tag='kv0')
    some(per_dma)
    for f in x_dma_ops(1) + w_dma_ops(1):
        f(); some(per_dma)
    def pf3_touch():
        lab = e.label('L_p3')
        e(f'''
        s_and_b32 {s_t}, s2, 0xc2
        s_cmp_ge_u32 {s_t}, 0xc0
        s_cbranch_scc1 {lab}
        s_bitcmp1_b32 s2, 1
        s_cbranch_scc1 {lab}
        s_lshr_b32 {s_t}, s2, 3
        s_lshl_b32 {s_t}, {s_t}, 2
        s_add_u32 {s_t}, {s_t}, s3
        s_lshl_b32 {s_t}, {s_t}, 10
        s_add_u32 {s_t}, {s_t}, 384
        v_mul_u32_u24 v204, {96*64}, v{vL16}
        s_mov_b64 exec, 0xffff
        ''')
        e(f'buffer_load_dword v205, v204, {W}, {s_t} offen', count=False)
        e('s_mov_b64 exec, -1')
        e.place(lab)
    some(999)
    if pf3 == 1: pf3_touch()
    if tlb:
        e('s_mov_b64 exec, 1')
        lst = [(OUT, s_out), (WO, s_wos), (WS, s_Og), (WS, s_O)]
        if tlb > 1: lst += [(WS, s_O2), (WS, s_Pg), (WS, s_Gg), (WS, s_F)]
        for i_, (srd, so) in enumerate(lst):
            e(f'buffer_load_dword v{200+i_}, v{vZero}, {srd}, {so} offen', tag='tlb')
        e('s_mov_b64 exec, -1')
    pz_store(T, T, 'pst0'); e('s_mov_b64 exec, -1')
    def lds(base, addr):
        return base + (addr >> 16), addr & 0xffff
    def kv_reads(ks):
        j, t = divmod(ks, 4)
        sl = CSLOT[j]
        buf = Wf + (ks % 2) * 8
        ops = []
        for sec in range(2):
            r, o = lds(vXA + 3*t, sl + sec * 4096)
            ops.append(f'ds_read_b128 {ar(ks*8 + sec*4, 4)}, v{r} offset:{o}')
        for sec in range(2):
            for hf in range(2):
                r, o = lds(vWA, sl + 16384 + t * 4096 + sec * 2048 + hf * 512)
                ops.append(f'ds_read_b64_tr_b16 {vr(buf + sec*4 + hf*2, 2)}, v{r} offset:{o}')
        if t == 0:
            r, o = lds(vGA, sl)
            ops.append(f'ds_read_b32 v{vGt + (j & 1)}, v{r} offset:{o}')
        if ks in (1, 2):
            for q in range(2):
                qq = (ks - 1) * 2 + q
                ops.append(f'ds_read2_b32 {vr(vGW + 2*qq, 2)}, v{vGWa} offset0:{qq*64} offset1:{qq*64+32}')
        return ops
    def kv_mfmas(ks):
        buf = Wf + (ks % 2) * 8
        ops = []
        for sec, acc in ((0, accK), (1, accV)):
            for rt in range(2):
                c = '0' if ks == 0 else vr(acc + rt*16, 16)
                if 'k' in x16:
                    t = []
                    for h in range(2):
                        a = acc + ((ks % 2) * 4 + rt * 2 + h) * 4
                        t.append(f'v_mfma_f32_16x16x32_bf16 {vr(a,4)}, {ar(ks*8+h*4,4)}, {vr(buf + sec*4, 4)}, {"0" if ks < 2 else vr(a,4)}')
                    ops.append('\n'.join(t))
                    continue
                ops.append(f'v_mfma_f32_32x32x16_bf16 {vr(acc + rt*16, 16)}, {ar(ks*8 + rt*4, 4)}, {vr(buf + sec*4, 4)}, {c}')
        return ops
    slow = []
    stream = []
    for j in range(2, 8):
        earliest = max(j - look, (j - 4) if j >= 5 else 0, 1 if j == 4 else 0)
        for f in x_dma_ops(j) + w_dma_ops(j): stream.append((earliest, f))
    wq_late = []
    for q in range(8):
        for f in wq_dma_ops(q):
            if q >= 8 - wq_e1: wq_late.append(f)
            else: stream.append((5 if q >= 4 else 4, f))
    nonce_load = f'buffer_load_dwordx4 {vr(vN,4)}, v{vZero}, {DBG}, 0 offen sc1'
    for gI in range(wo_tail):
        ops_ = [(6 if gI == 0 else 7, f) for f in wo_dma_ops(gI)]
        if gI == 0 and g0_pos >= 0:
            stream[48 + g0_pos:48 + g0_pos] = ops_
        else:
            stream.extend(ops_)
    for rt in range(2):
        for hd in range(2):
            stream.append((7, (lambda: issued.__setitem__('poi', issued.get('poi', 0) + 1)) if x_nopoi else (lambda rt=rt, hd=hd: o_store(rt, hd, T, 'poi'))))
    stream.append((7, g_store))
    cur_bar = [-1]
    extra_q = []
    def spin_slow(name, reload, cmp):
        ls = e.label(f'L_{name}s'); lo = e.label(f'L_{name}o')
        e(f'{cmp}\n s_cbranch_vccnz {ls}')
        e.place(lo)
        def s():
            e.place(ls)
            e(f'''
            s_add_u32 {s_spin}, {s_spin}, 1
            s_cmp_gt_u32 {s_spin}, {MAXSPIN}
            s_cbranch_scc1 {lo}
            {reload}
            s_waitcnt vmcnt(0)
            {cmp}
            s_cbranch_vccnz {ls}
            s_branch {lo}
            ''')
        slow.append(s)
    def chunk_barrier(j):
        need = 8 + (2 if j == 0 else 0)
        assert issued.get(f'kv{j}', 0) == need, (j, issued)
        if j == 6: assert not setup
        if j == flag_bar:
            assert issued['nonce'] == 1
            e.wait_tag('nonce')
        e.wait_tag(f'kv{j}', lg=0)
        e('s_barrier')
        if j == 0:
            stamp()
            extra_q.append(lambda: e(nonce_load, tag='nonce'))
            if pf3 == 2: extra_q.append(pf3_touch)
        cur_bar[0] = j
        if j == flag_bar:
            def fl():
                spin_slow('n', nonce_load, f'v_cmp_eq_u32 vcc, 0, v{vN}')
                lf = e.label('L_nf1')
                e(f's_cmp_lg_u32 s3, 0\n s_cbranch_scc1 {lf}\n s_mov_b64 exec, 0xff\n s_add_u32 {s_t}, {s_F}, {F1_OFF - F_OFF}')
                e(f'buffer_store_dwordx4 {vr(vN,4)}, v{vL16}, {WS}, {s_t} offen sc1', count=False)
                e('s_mov_b64 exec, -1')
                e.place(lf)
            extra_q.append(fl)
    g = vGacc
    gate_ops = [f'v_add_f32_dpp v{g}, v{g}, v{g} row_shr:{sh} row_mask:0xf bank_mask:0xf bound_ctrl:0' for sh in (1, 2, 4, 8)]
    gate_ops += [f'v_add_f32_dpp v{g}, v{g}, v{g} row_bcast:15 row_mask:0xa bank_mask:0xf\n v_mul_f32 v{g}, 0xbfb8aa3b, v{g}\n v_exp_f32 v{g}, v{g}',
                 f'v_add_f32 v{g}, 1.0, v{g}\n v_rcp_f32 v{g}, v{g}']
    def issue_one():
        if len(stream) == 1 and gate_ops: return False
        if stream and stream[0][0] <= cur_bar[0]:
            stream.pop(0)[1]()
            return True
        return False
    nsetup = len(setup)
    chunk_barrier(0)
    for op in kv_reads(0): e(op)
    for ks in range(32):
        nxt = ks + 1
        rd = []
        if nxt < 32:
            if nxt % 4 == 0:
                chunk_barrier(nxt // 4)
            rd = kv_reads(nxt)
        mf = kv_mfmas(ks)
        for i in range(4):
            e(mf[i])
            for _ in range(2):
                if rd: e(rd.pop(0))
            kvdone = issued.get('kv7', 0) == 8
            if (i in (1, 3) and not (kvdone and kv_pace == 1 and i == 1)) or (ks < ramp_ks and i == 0) or (ks >= tail_from and len(stream) > 2 * (31 - ks) + (2 if i == 0 else 1)):
                issue_one()
            elif extra_q and i == 2 and not setup:
                extra_q.pop(0)()
            if ks >= 29 and gate_ops: e(gate_ops.pop(0))
            while setup and e.slots < 5:
                e(setup.pop(0))
        while rd: e(rd.pop(0))
        if (ks % 4 == 3 and ks < 28) or ks == 28:
            j = ks // 4
            e(f'v_dot2c_f32_bf16 v{vGacc}, v{vGt + (j & 1)}, v{vGW + j}')
    while issue_one(): pass
    assert not stream
    stamp()
    jit(1)
    def phi_ops(src, n, dst):
        ops = []
        for b in range(0, n, 8):
            for i in range(0, 8, 2):
                ops.append((1, f'v_pk_mul_f32 {vr(T+i,2)}, {vr(src+b+i,2)}, {s_l2e}'))
            for i in range(0, 8, 2):
                ops.append((2, f'v_exp_f32_e64 v{T+i}, v{T+i} clamp'))
                ops.append((2, f'v_exp_f32_e64 v{T+i+1}, v{T+i+1} clamp'))
                ops.append((1, f'v_max_f32 v{src+b+i}, {s_eps}, v{src+b+i}'))
                ops.append((1, f'v_max_f32 v{src+b+i+1}, {s_eps}, v{src+b+i+1}'))
            for i in range(0, 8, 2):
                ops.append((1, f'v_pk_add_f32 {vr(src+b+i,2)}, {vr(src+b+i,2)}, {vr(T+i,2)}'))
            for i in range(0, 8, 2):
                ops.append((1, f'v_cvt_pk_bf16_f32 v{dst+(b+i)//2}, v{src+b+i}, v{src+b+i+1}'))
        return ops
    def dz(q):
        return f'v_mfma_f32_32x32x16_bf16 {vr(DZ,16)}, {vr(PK+q*4,4)}, {vr(ONES,4)}, {"0" if q == 0 else vr(DZ, 16)}'
    def dd(q):
        return f'v_mfma_f32_32x32x16_bf16 {vr(D,16)}, {vr(PK+q*4,4)}, {vr(VF+q*4,4)}, {"0" if q == 0 else vr(D, 16)}'
    def cvtv(q):
        return [(1, f'v_cvt_pk_bf16_f32 v{VF + q*4 + i//2}, v{accV+q*8+i}, v{accV+q*8+i+1}') for i in range(0, 8, 2)]
    fill = []
    for q in range(4):
        blk = phi_ops(accK + q*8, 8, PK + q*4)
        blk = blk[:-4] + cvtv(q) + blk[-4:]
        if q > 0:
            blk = blk[:4] + [(MF, dz(q-1))] + blk[4:8] + [(MF, dd(q-1))] + blk[8:]
        fill += blk
    fill += [(MF, dd(3)), (MF, dz(3)), (SKIP, None)]
    if tailw: fill += [('BUD', tailw), (SKIP, None), (SKIP, None)]
    for j in range(8):
        fill.append((1, f'v_cndmask_b32_e64 v{accK+j}, v{D+j}, v{D+8+j}, {s_m16}'))
        if j % 4 == 3:
            fill.append((2, f'ds_write_b128 v{vSw}, {vr(accK+j-3,4)} offset:{KVSCR + (j//4)*1024}'))
    for j in range(8):
        fill.append((1, f'v_cndmask_b32_e64 v{accK+8+j}, v{DZ+8+j}, v{DZ+j}, {s_m16}'))
        if j % 4 == 3:
            fill.append((2, f'ds_write_b128 v{vZw}, {vr(accK+8+j-3,4)} offset:{(j//4)*64}'))
    R = accV
    def bkv():
        assert issued['poi'] == 5
        e.wait_tag('poi', lg=0)
        e('s_barrier')
        e(f'ds_read_b128 {vr(R,4)}, v{vSr} offset:{KVSCR}')
        e(f'ds_read_b128 {vr(R+4,4)}, v{vSr} offset:{KVSCR+1024}')
        e(f'ds_read_b128 {vr(R+8,4)}, v{vZr}')
        e(f'ds_read_b128 {vr(R+12,4)}, v{vZr} offset:256')
    fill += [(SKIP, None)] * (2 if tailw else 1) + [(1, bkv), (SKIP, None), (SKIP, None)]
    if tailw:
        fill += [(SKIP, None), (SKIP, None)]
        fill += [(1, f'v_add_f32 v{R+i}, v{R+i}, v{accK+i}') for i in range(8)]
        fill += [(1, f'v_add_f32 v{R+8+i}, v{R+8+i}, v{R+12+i}') for i in range(4)]
        fill += [(1, f'v_cvt_pk_bf16_f32 v{R+12+i//2}, v{R+i}, v{R+i+1}') for i in range(0, 8, 2)]
        fill += [(SKIP, None)]
    t0 = [None]
    cnt = [0]
    def pub():
        if not tailw:
            for i in range(0, 8, 2):
                e(f'v_pk_add_f32 {vr(R+i,2)}, {vr(R+i,2)}, {vr(accK+i,2)}')
            e(f'v_pk_add_f32 {vr(R+8,2)}, {vr(R+8,2)}, {vr(R+12,2)}')
            e(f'v_pk_add_f32 {vr(R+10,2)}, {vr(R+10,2)}, {vr(R+14,2)}')
            for i in range(0, 8, 2):
                e(f'v_cvt_pk_bf16_f32 v{R+12+i//2}, v{R+i}, v{R+i+1}')
        jit(2)
        pz_store(R + 12, R + 8, 'pst')
        lf = e.label('L_nf')
        e(f's_cmp_lg_u32 s3, 0\n s_cbranch_scc1 {lf}')
        e(f'buffer_store_dwordx4 {vr(vN,4)}, v{vL16}, {WS}, {s_F} offen sc1', count=False)
        e.place(lf)
        e('s_mov_b64 exec, -1')
        stamp()
        t0[0] = cnt[0]
    fill.append((1, pub))
    def q_reads(ks):
        buf = Wf + (ks % 4) * 4
        ops = []
        for hf in range(2):
            r, o = lds(vWA, WQ + ks * 2048 + hf * 512)
            ops.append(f'ds_read_b64_tr_b16 {vr(buf + hf*2, 2)}, v{r} offset:{o}')
        return ops
    def q_mf(n):
        ks, rt = divmod(n, 2)
        buf = Wf + (ks % 4) * 4
        c = '0' if ks == 0 else vr(accQ + rt*16, 16)
        if 'q' in x16:
            t = []
            for h in range(2):
                a = accQ + ((ks % 2) * 4 + rt * 2 + h) * 4
                t.append(f'v_mfma_f32_16x16x32_bf16 {vr(a,4)}, {vr(buf,4)}, {ar(ks*8+(h)*4,4)}, {"0" if ks < 2 else vr(a,4)}')
            return '\n'.join(t)
        return f'v_mfma_f32_32x32x16_bf16 {vr(accQ+rt*16,16)}, {vr(buf,4)}, {ar(ks*8+rt*4,4)}, {c}'
    ZG = GA + 32
    z_load = f'buffer_load_dwordx4 {vr(ZG,4)}, v{vZld}, {WS}, {s_Zg} offen sc1'
    def p_load(q):
        return f'buffer_load_dwordx4 {vr(GA+q*4,4)}, v{vLX}, {WS}, {s_Pg if q < 4 else s_t} offen offset:{(q%4)*1024} sc1'
    def gather_ops():
        ops = [lambda: e(z_load, tag='ga')]
        for q in range(8):
            def f(q=q):
                if q == 4:
                    e(f's_add_u32 {s_t}, {s_Pg}, 4096')
                e(p_load(q), tag='ga')
            ops.append(f)
        return ops
    f1_load = f'buffer_load_dwordx2 {vr(vFl,2)}, v{vFa}, {WS}, 0 offen sc1'
    f2_load = f'buffer_load_dwordx2 {vr(vFl,2)}, v{vF2a}, {WS}, 0 offen sc1'
    fcmp = f'v_cmp_ne_u64 vcc, {vr(vN,2)}, {vr(vFl,2)}'
    e(f1_load, tag='fl')
    vw = []
    for gI in range(wo_tail, 7): vw += [(gI, f) for f in wo_dma_ops(gI)]
    gq = gather_ops()
    ne = [0]
    for k_ in range(e1_lead):
        run(fill.pop(0)[1])
        if k_ % e1_step == 0 and wq_late: wq_late.pop(0)()
    assert issued['wq'] == 16
    e.wait_tag('wq', lg=0)
    e('s_barrier')
    QLA = 2
    for ks in range(QLA):
        for op in q_reads(ks): e(op)
    n = 0
    checked = [False]
    mid = [False]
    first = True
    nwo = [0]
    def wo_ok():
        return vw and (vw[0][0] < 5 or mid[0])
    while n < 64:
        if first:
            first = False; e.slots = 0
        elif fill and fill[0][0] == MF:
            e(fill.pop(0)[1])
        else:
            e(q_mf(n))
            ks, rt = divmod(n, 2)
            if ks + QLA < 32:
                e(q_reads(ks + QLA)[rt])
            n += 1
        cnt[0] += 1
        if n == midq and not mid[0]:
            assert t0[0] is not None and midq >= 33
            mid[0] = True
            e('s_barrier')
        if t0[0] is None and we_from <= cnt[0] <= we_to and cnt[0] % wo_gap == 0 and wo_ok():
            vw.pop(0)[1]()
        if t0[0] is not None:
            dt = cnt[0] - t0[0]
            if dt < gdelay:
                if wo_ok() and dt % wo_gap == 0 and dt < gdelay - 3 and nwo[0] < wo_max:
                    vw.pop(0)[1](); nwo[0] += 1
            else:
                if not checked[0]:
                    ne[0] = (28 - len(vw)) // 4
                    spin_slow('f', f1_load, fcmp)
                    checked[0] = True
                if gq:
                    gq.pop(0)()
                elif wo_ok() and dt >= gdelay + gpause and dt % wo_gap == 0 and n <= wo_stop:
                    vw.pop(0)[1]()
        while fill and fill[0][0] != MF:
            if fill[0][0] == SKIP:
                fill.pop(0); break
            if fill[0][0] == 'BUD':
                budget = fill.pop(0)[1]; continue
            if e.slots + fill[0][0] > budget: break
            run(fill.pop(0)[1])
    assert t0[0] is not None and checked[0] and not gq and not fill and mid[0]
    stamp()
    if merge != 2:
        PQ = accK
        n_early = ne[0]
        ph = phi_ops(accQ, 32, PQ)
        nphi = min(len(vw), phi_max)
        left = [nphi]
        step = max(1, (len(ph) // 2 if merge else len(ph)) // (nphi + 1))
        pc = [0]
        def phi_some(k):
            for _ in range(k):
                if ph:
                    run(ph.pop(0)[1]); pc[0] += 1
                    if pc[0] % step == 0 and vw and left[0]:
                        vw.pop(0)[1](); left[0] -= 1
        phi_some(28 if merge else 999)
        stamp()
        TZ = 28
        lab_zs = e.label('L_zslow'); lab_zo = e.label('L_zok')
        zchk = f'''
        v_max3_u32 v{TZ}, v{ZG}, v{ZG+1}, v{ZG+2}
        v_max_u32 v{TZ}, v{TZ}, v{ZG+3}
        v_cmp_eq_u32 vcc, -1, v{TZ}
        '''
        e(zchk)
        e(f's_cbranch_vccnz {lab_zs}')
        e.place(lab_zo)
        def zslow():
            e.place(lab_zs)
            e(f'''
            s_or_b32 {s_mask}, vcc_lo, vcc_hi
            s_lshr_b32 {s_t}, {s_mask}, 16
            s_or_b32 {s_mask}, {s_mask}, {s_t}
            s_lshl_b32 {s_t}, {rh}, 3
            s_lshr_b32 {s_mask}, {s_mask}, {s_t}
            s_add_u32 {s_spin}, {s_spin}, 1
            s_cmp_gt_u32 {s_spin}, {MAXSPIN}
            s_cbranch_scc1 {lab_zo}
            s_add_u32 {s_t}, {s_Pg}, 4096
            s_waitcnt vmcnt(0)
            {z_load}
            ''')
            for q in range(8):
                l = e.label('L_zq')
                e(f's_bitcmp0_b32 {s_mask}, {q}\n s_cbranch_scc1 {l}')
                e(p_load(q))
                e.place(l)
            e('s_waitcnt vmcnt(0)')
            e(zchk)
            e(f's_cbranch_vccnz {lab_zs}\n s_branch {lab_zo}')
        slow.append(zslow)
        D2 = 224; ZP = 212; FA = 216; FB = GA
        zops = []
        for ro in (8, 4, 2, 1):
            for i in range(4):
                zops.append(f'v_add_f32_dpp v{ZG+i}, v{ZG+i}, v{ZG+i} row_ror:{ro} row_mask:0xf bank_mask:0xf')
        zops += [f'v_cvt_pk_bf16_f32 v{TZ}, v{ZG}, v{ZG+1}', f'v_cvt_pk_bf16_f32 v{TZ+1}, v{ZG+2}, v{ZG+3}',
                 f'v_cndmask_b32_e64 v{ZP}, v{TZ}, 0, {s_rhm}', f'v_cndmask_b32_e64 v{ZP+1}, v{TZ+1}, 0, {s_rhm}',
                 f'v_cndmask_b32_e64 v{ZP+2}, 0, v{TZ}, {s_rhm}', f'v_cndmask_b32_e64 v{ZP+3}, 0, v{TZ+1}, {s_rhm}']
        def red_mf(q):
            return f'v_mfma_f32_32x32x16_bf16 {vr(D2,16)}, {vr(SEL,4)}, {vr(GA+q*4,4)}, {"0" if q == 0 else vr(D2,16)}'
        for q in range(8):
            e(red_mf(q))
            if merge:
                for _ in range(3):
                    if zops: e(zops.pop(0))
                while ph and e.slots < 6: phi_some(1)
            elif q >= 4:
                for _ in range(6):
                    if zops: e(zops.pop(0))
        assert not zops
        if merge: phi_some(8)
        lab_gslow = e.label('L_gslow'); lab_gok = e.label('L_gok')
        e(f'v_cmp_u_f32 vcc, v{D2}, v{D2}')
        e(f's_cbranch_vccnz {lab_gslow}')
        e.place(lab_gok)
        def gslow():
            e.place(lab_gslow)
            e(f'''
            s_add_u32 {s_spin}, {s_spin}, 1
            s_cmp_gt_u32 {s_spin}, {MAXSPIN}
            s_cbranch_scc1 {lab_gok}
            s_add_u32 {s_t}, {s_Pg}, 4096
            ''')
            for q in range(8): e(p_load(q))
            e('s_waitcnt vmcnt(0)')
            e(f'v_max_u32 v{TZ}, v{GA}, v{GA+1}')
            for q in range(2, 32, 2):
                e(f'v_max3_u32 v{TZ}, v{TZ}, v{GA+q}, v{GA+q+1}')
            e(f'v_cmp_eq_u32 vcc, -1, v{TZ}\n s_cbranch_vccnz {lab_gslow}')
            for q in range(8): e(red_mf(q))
            e(f's_nop 15\n s_branch {lab_gok}')
        slow.append(gslow)
        stamp()
        for jj in range(4):
            e(f'v_cvt_pk_bf16_f32 v{D2+8+jj}, v{D2+2*jj}, v{D2+2*jj+1}')
        for jj in range(4):
            e(f'v_cndmask_b32_e64 v{FA+jj}, v{D2+8+jj}, v{ZP+jj}, {s_m16}')
        e(f'ds_write_b128 v{vSw}, {vr(FA,4)} offset:{GXSCR}')
        for jj in range(4):
            e(f'v_cndmask_b32_e64 v{FA+4+jj}, v{ZP+jj}, v{D2+8+jj}, {s_m16}')
        e(f'ds_write_b128 v{vSw}, {vr(FA+4,4)} offset:{GXSCR+1024}')
        OD = 64
        def o_mf(rt, hd, fr, first):
            b = OD + (rt*2 + hd) * 16
            e(f'v_mfma_f32_32x32x16_bf16 {vr(b,16)}, {vr(fr+hd*4,4)}, {vr(PQ+(rt*2+hd)*4,4)}, {"0" if first else vr(b,16)}')
        def o_fin(rt, hd):
            b = OD + (rt*2 + hd) * 16
            num = b + (0 if hd == 0 else 8); den = b + (8 if hd == 0 else 0)
            e(f'v_add_f32 v{den}, {s_eps}, v{den}')
            e(f'v_rcp_f32 v{den}, v{den}')
            for i in range(0, 8, 2):
                e(f'v_pk_mul_f32 {vr(num+i,2)}, {vr(num+i,2)}, {vr(den,2)} op_sel_hi:[1,0]')
            for i in range(0, 8, 2):
                e(f'v_cvt_pk_bf16_f32 v{den+4+i//2}, v{num+i}, v{num+i+1}')
            o_store(rt, hd, den + 4)
        def bgx():
            e.wait(lg=0)
            e('s_barrier')
            e(f'ds_read_b128 {vr(FB,4)}, v{vSr} offset:{GXSCR}')
            e(f'ds_read_b128 {vr(FB+4,4)}, v{vSr} offset:{GXSCR+1024}')
        if not merge:
            o_mf(0, 0, FA, True); o_mf(1, 0, FA, True)
            bgx()
            o_mf(0, 1, FA, True); o_mf(1, 1, FA, True)
            o_mf(0, 0, FB, False); o_mf(1, 0, FB, False); o_mf(0, 1, FB, False); o_mf(1, 1, FB, False)
            e(f2_load, tag='f2l')
            o_fin(0, 0); jit(3); o_fin(1, 0); o_fin(0, 1); jit(4); o_fin(1, 1)
        else:
            left[0] = 0
            while len(ph) > 56: phi_some(1)
            o_mf(0, 0, FA, True); phi_some(4); o_mf(0, 1, FA, True); phi_some(4)
            bgx()
            e(f2_load, tag='f2l')
            phi_some(12)
            o_mf(0, 0, FB, False); phi_some(4); o_mf(0, 1, FB, False)
            while len(ph) > 28: phi_some(1)
            phi_some(2)
            o_mf(1, 0, FA, True); phi_some(4); o_mf(1, 0, FB, False)
            phi_some(99)
            o_fin(0, 0)
            o_mf(1, 1, FA, True); o_mf(1, 1, FB, False)
            o_fin(0, 1); o_fin(1, 0); o_fin(1, 1)
        stamp()

    else:
        PQ = accK
        n_early = ne[0]
        TM = 80; TZ = 28
        D2 = 224; ZP = 212; FA = 216; FB = GA
        nphi = min(len(vw), phi_max)
        Mo = lambda b: [f'v_pk_mul_f32 {vr(TM+b*8+i,2)}, {vr(accQ+b*8+i,2)}, {s_l2e}' for i in range(0, 8, 2)]
        def Xo(b):
            r = []
            for i in range(0, 8, 2):
                r += [f'v_exp_f32_e64 v{TM+b*8+i}, v{TM+b*8+i} clamp', f'v_exp_f32_e64 v{TM+b*8+i+1}, v{TM+b*8+i+1} clamp',
                      f'v_max_f32 v{accQ+b*8+i}, {s_eps}, v{accQ+b*8+i}', f'v_max_f32 v{accQ+b*8+i+1}, {s_eps}, v{accQ+b*8+i+1}']
            return r
        Ao = lambda b: [f'v_pk_add_f32 {vr(accQ+b*8+i,2)}, {vr(accQ+b*8+i,2)}, {vr(TM+b*8+i,2)}' for i in range(0, 8, 2)]
        Co = lambda b: [f'v_cvt_pk_bf16_f32 v{PQ+b*4+i//2}, v{accQ+b*8+i}, v{accQ+b*8+i+1}' for i in range(0, 8, 2)]
        lab_zs = e.label('L_zslow'); lab_zo = e.label('L_zok')
        zchk = f"""
        v_max3_u32 v{TZ}, v{ZG}, v{ZG+1}, v{ZG+2}
        v_max_u32 v{TZ}, v{TZ}, v{ZG+3}
        v_cmp_eq_u32 vcc, -1, v{TZ}
        """
        stamp(True)
        e(zchk)
        for b in range(4):
            for op in Mo(b): e(op)
        e(f's_cbranch_vccnz {lab_zs}')
        e.place(lab_zo)
        def zslow():
            e.place(lab_zs)
            e(f"""
            s_or_b32 {s_mask}, vcc_lo, vcc_hi
            s_lshr_b32 {s_t}, {s_mask}, 16
            s_or_b32 {s_mask}, {s_mask}, {s_t}
            s_lshl_b32 {s_t}, {rh}, 3
            s_lshr_b32 {s_mask}, {s_mask}, {s_t}
            s_add_u32 {s_spin}, {s_spin}, 1
            s_cmp_gt_u32 {s_spin}, {MAXSPIN}
            s_cbranch_scc1 {lab_zo}
            s_add_u32 {s_t}, {s_Pg}, 4096
            s_waitcnt vmcnt(0)
            {z_load}
            """)
            for q in range(8):
                l = e.label('L_zq')
                e(f's_bitcmp0_b32 {s_mask}, {q}\n s_cbranch_scc1 {l}')
                e(p_load(q))
                e.place(l)
            e('s_waitcnt vmcnt(0)')
            e(zchk)
            e(f's_cbranch_vccnz {lab_zs}\n s_branch {lab_zo}')
        slow.append(zslow)
        stamp()
        zops = []
        for ro in (8, 4, 2, 1):
            for i in range(4):
                zops.append(f'v_add_f32_dpp v{ZG+i}, v{ZG+i}, v{ZG+i} row_ror:{ro} row_mask:0xf bank_mask:0xf')
        zops += [f'v_cvt_pk_bf16_f32 v{TZ}, v{ZG}, v{ZG+1}', f'v_cvt_pk_bf16_f32 v{TZ+1}, v{ZG+2}, v{ZG+3}',
                 f'v_cndmask_b32_e64 v{ZP}, v{TZ}, 0, {s_rhm}', f'v_cndmask_b32_e64 v{ZP+1}, v{TZ+1}, 0, {s_rhm}',
                 f'v_cndmask_b32_e64 v{ZP+2}, 0, v{TZ}, {s_rhm}', f'v_cndmask_b32_e64 v{ZP+3}, 0, v{TZ+1}, {s_rhm}']
        def red_mf(q):
            return f'v_mfma_f32_32x32x16_bf16 {vr(D2,16)}, {vr(SEL,4)}, {vr(GA+q*4,4)}, {"0" if q == 0 else vr(D2,16)}'
        xq = Xo(0)[:pre_x]
        for op in xq: e(op)
        xq = zops + Xo(0)[pre_x:] + Xo(1)
        def fillq(q, bud):
            while q and e.slots < bud: e(q.pop(0))
        left = nphi
        stamp(True)
        e.wait_tag('ga')
        stamp(True)
        for q in range(8):
            e(red_mf(q))
            if left and q % 2 == 1:
                vw.pop(0)[1](); left -= 1
            fillq(xq, 6)
        stamp(True)
        for _ in range(8):
            if xq: e(xq.pop(0))
        lab_gslow = e.label('L_gslow'); lab_gok = e.label('L_gok')
        cv4 = [f'v_cvt_pk_bf16_f32 v{D2+8+jj}, v{D2+2*jj}, v{D2+2*jj+1}' for jj in range(4)]
        e(f'v_cmp_u_f32 vcc, v{D2}, v{D2}')
        for op in cv4: e(op)
        e(f's_cbranch_vccnz {lab_gslow}')
        e.place(lab_gok)
        def gslow():
            e.place(lab_gslow)
            e(f"""
            s_add_u32 {s_spin}, {s_spin}, 1
            s_cmp_gt_u32 {s_spin}, {MAXSPIN}
            s_cbranch_scc1 {lab_gok}
            s_add_u32 {s_t}, {s_Pg}, 4096
            """)
            for q in range(8): e(p_load(q))
            e('s_waitcnt vmcnt(0)')
            e(f'v_max_u32 v{TZ}, v{GA}, v{GA+1}')
            for q in range(2, 32, 2):
                e(f'v_max3_u32 v{TZ}, v{TZ}, v{GA+q}, v{GA+q+1}')
            e(f'v_cmp_eq_u32 vcc, -1, v{TZ}\n s_cbranch_vccnz {lab_gslow}')
            for q in range(8): e(red_mf(q))
            for op in cv4: e(op)
            e(f's_branch {lab_gok}')
        slow.append(gslow)
        assert not any('dpp' in x or 'cndmask' in x for x in xq)
        stamp(True)
        for jj in range(4):
            e(f'v_cndmask_b32_e64 v{FA+jj}, v{D2+8+jj}, v{ZP+jj}, {s_m16}')
        e(f'ds_write_b128 v{vSw}, {vr(FA,4)} offset:{GXSCR}')
        for jj in range(4):
            e(f'v_cndmask_b32_e64 v{FA+4+jj}, v{ZP+jj}, v{D2+8+jj}, {s_m16}')
        e(f'ds_write_b128 v{vSw}, {vr(FA+4,4)} offset:{GXSCR+1024}')
        while xq: e(xq.pop(0))
        for op in Ao(0): e(op)
        stamp(True)
        e.wait(lg=0)
        e('s_barrier')
        stamp(True)
        e(f'ds_read_b128 {vr(FB,4)}, v{vSr} offset:{GXSCR}')
        e(f'ds_read_b128 {vr(FB+4,4)}, v{vSr} offset:{GXSCR+1024}')
        stamp()
        for _ in range(wo_afterbgx):
            if vw: vw.pop(0)[1]()
        e(f2_load, tag='f2l')
        for op in Ao(1) + Co(0) + Co(1): e(op)
        ODs = {(0, 0): 64, (0, 1): 224, (1, 0): 184, (1, 1): 112}
        def o_mf(rt, hd, fr, first):
            b = ODs[(rt, hd)]
            e(f'v_mfma_f32_32x32x16_bf16 {vr(b,16)}, {vr(fr+hd*4,4)}, {vr(PQ+(rt*2+hd)*4,4)}, {"0" if first else vr(b,16)}')
        def fin_ops(rt, hd, pk):
            b = ODs[(rt, hd)]
            num = b + (0 if hd == 0 else 8); den = b + (8 if hd == 0 else 0)
            r = [f'v_add_f32 v{den}, {s_eps}, v{den}', f'v_rcp_f32 v{den}, v{den}']
            if pk: r += [f'v_pk_mul_f32 {vr(num+i,2)}, {vr(num+i,2)}, {vr(den,2)} op_sel_hi:[1,0]' for i in range(0, 8, 2)]
            else: r += [f'v_mul_f32 v{num+i}, v{num+i}, v{den}' for i in range(8)]
            r += [f'v_cvt_pk_bf16_f32 v{den+4+i//2}, v{num+i}, v{num+i+1}' for i in range(0, 8, 2)]
            r.append(lambda: o_store(rt, hd, den + 4))
            return r
        stamp(True)
        xq = Xo(2) + Xo(3)
        for (hd, fr, first) in ((0, FA, True), (1, FA, True), (0, FB, False), (1, FB, False)):
            o_mf(0, hd, fr, first); fillq(xq, 6)
        while xq: e(xq.pop(0))
        stamp(True)
        for op in Ao(2) + Ao(3) + Co(2) + Co(3): e(op)
        stamp(True)
        f0 = fin_ops(0, 0, False); f1 = fin_ops(0, 1, False)
        fq = f0[:2] + f1[:2] + f0[2:] + f1[2:]
        for (hd, fr, first) in ((0, FA, True), (0, FB, False), (1, FA, True), (1, FB, False)):
            o_mf(1, hd, fr, first)
            while fq and e.slots < 6: run(fq.pop(0))
        while fq: run(fq.pop(0))
        stamp(True)
        jit(3)
        f0 = fin_ops(1, 0, True); f1 = fin_ops(1, 1, True)
        for x in f0[:2] + f1[:2] + f0[2:] + f1[2:]: run(x)
        stamp()
        stamp(True)
    def wo_read_ops(g):
        ops = []
        for t in range(4):
            i = g * 4 + t
            for gm in range(2):
                for hf in range(2):
                    r, o = lds(vOA + gm*3, WOG[g] + hf*4096 + t*1024)
                    ops.append(f'ds_read_b64_tr_b16 {ar((i*2+gm)*4 + hf*2, 2)}, v{r} offset:{o}')
        return ops
    rdq = []
    for gI in range(n_early): rdq += wo_read_ops(gI)
    n_mid = (28 - len(vw)) // 4
    late = [f for _, f in vw] + wo_dma_ops(7)
    nlate = len(late)
    for f in late: f()
    spin_slow('h', f2_load, fcmp)
    if n_mid > n_early:
        e('s_barrier')
        for gI in range(n_early, n_mid): rdq += wo_read_ops(gI)
    ACC = 192
    zq = [f'v_pk_mov_b32 {vr(ACC+i,2)}, 0, 0' for i in range(0, 32, 2)] + [f'v_and_b32 v{vGo2}, 0x1f0, v{vL16}', f'v_lshlrev_b32 v{vGo2}, 2, v{vGo2}', f's_mov_b32 {s_mask}, 0', f'v_xor_b32 v46, 8192, v{vFw}']
    nrd = 0
    while rdq and nrd < rd_pre:
        e(rdq.pop(0)); nrd += 1
    if ost_wait: e.wait_tag('ost')
    stamp()
    def OF(i): return 48 + i*4 if i < 20 else 144 + (i - 20) * 4
    NG = 32 // gs
    def o_load(i):
        if i % 4 == 0:
            e(f's_add_u32 {s_t}, {s_ro}, {(i//4)*4096}\n s_and_b32 {s_t}, {s_t}, 0x7fff\n s_add_u32 {s_t}, {s_t}, {s_Og}')
        e(f'buffer_load_dwordx4 {vr(OF(i),4)}, v{vLX}, {WS}, {s_t} offen offset:{(i%4)*1024} sc1', tag=f'o{i}')
    def o_reload(g):
        i = g * gs
        e(f's_add_u32 {s_t}, {s_ro}, {(i//4)*4096}\n s_and_b32 {s_t}, {s_t}, 0x7fff\n s_add_u32 {s_t}, {s_t}, {s_Og}')
        for k in range(i, i + gs):
            e(f'buffer_load_dwordx4 {vr(OF(k),4)}, v{vLX}, {WS}, {s_t} offen offset:{(k%4)*1024} sc1')
    g_load = f'buffer_load_dword v{vGv}, v{vGo2}, {WS}, {s_Gg} offen sc1'
    NA = oahead * 4
    for i in range(NA): o_load(i)
    while zq: e(zq.pop(0))
    while rdq: e(rdq.pop(0))
    e.wait_tag('wo7')
    e('s_barrier')
    for gI in range(n_mid, 8): rdq += wo_read_ops(gI)
    while rdq: e(rdq.pop(0))
    e.wait(lg=0)
    def check_ops(g):
        b = OF(g*gs); nr = gs * 4
        ops = [f'v_max3_u32 v{T}, v{b}, v{b+1}, v{b+2}']
        for q in range(3, nr - 1, 2):
            ops.append(f'v_max3_u32 v{T}, v{T}, v{b+q}, v{b+q+1}')
        ops.append(f'v_max_u32 v{T}, v{T}, v{b+nr-1}')
        ops.append(f'v_cmp_eq_u32 vcc, -1, v{T}')
        return ops
    def grp_mfs(g, last=False):
        r = []
        order = [(i, gm) for i in range(gs) for gm in (1, 0)]
        if last: order = [(i, 1) for i in range(gs)] + [(i, 0) for i in range(gs)]
        for i, gm in order:
            hi = g*gs + i
            r.append(f'v_mfma_f32_32x32x16_bf16 {vr(ACC+gm*16,16)}, {ar((hi*2+gm)*4,4)}, {vr(OF(hi),4)}, {vr(ACC+gm*16,16)}')
        return r
    gfin = [f'v_sub_f32 v44, 1.0, v{vGv}', f'v_cndmask_b32_e64 v44, v{vGv}, v44, {s_rhm}', 'v_mov_b32 v45, v44']
    fwr = [f'ds_write_b128 v{vFw}, {vr(ACC+16+q*4,4)} offset:{FSCR+q*1024}' for q in range(4)]
    for op in check_ops(0): e(op)
    for g in range(NG):
        lskip = e.label('L_osk'); lnext = e.label('L_onx')
        e(f's_cbranch_vccnz {lskip}')
        snap = e.snapshot()
        def side(g=g):
            lq = [lambda i=i: o_load(i) for i in range(g*gs + NA, min(32, (g+1)*gs + NA))]
            if g*gs + NA == 28: lq = [lambda: (e(g_load, tag='g'), o_load(28))] + lq[1:]
            ck = check_ops(g + 1) if g + 1 < NG else list(gfin)
            return lq, ck
        lq, ck = side()
        nm = 2 * gs
        for m, mf in enumerate(grp_mfs(g, g == NG - 1)):
            e(mf)
            if lq and (m < gs): lq.pop(0)()
            if g == NG - 1:
                while ck: e(ck.pop(0))
                if early_fin:
                    if gs == 4 and m >= 6:
                        for q in range(2*(m-6), 2*(m-6)+2): e(fwr[q])
                    elif gs < 4 and m == nm - 1:
                        for q in range(4): e(fwr[q])
            elif gs == 4:
                if m >= 5:
                    for _ in range(3):
                        if ck: e(ck.pop(0))
            elif m == nm - 2:
                while ck: e(ck.pop(0))
        assert not lq and not ck
        e.place(lnext)
        def oskip(g=g, lskip=lskip, lnext=lnext, snap=snap, side=side):
            e.restore(snap); e.hist = []
            e.place(lskip)
            e(f's_bitset1_b32 {s_mask}, {g}')
            lq, ck = side()
            for f in lq: f()
            for op in ck: e(op)
            e(f's_branch {lnext}')
        slow.append(oskip)
    lfix = e.label('L_ofix'); ldone = e.label('L_odone')
    e(f's_cmp_lg_u32 {s_mask}, 0\n s_cbranch_scc1 {lfix}')
    e.place(ldone)
    def ofix():
        e.place(lfix)
        e(f"""
        s_add_u32 {s_spin}, {s_spin}, 0x100
        s_cmp_gt_u32 {s_spin}, {MAXSPIN*256}
        s_cbranch_scc1 {ldone}
        """)
        for g in range(NG):
            l = e.label('L_fl')
            e(f's_bitcmp0_b32 {s_mask}, {g}\n s_cbranch_scc1 {l}')
            o_reload(g)
            e.place(l)
        e('s_waitcnt vmcnt(0)')
        for g in range(NG):
            l = e.label('L_fm')
            e(f's_bitcmp0_b32 {s_mask}, {g}\n s_cbranch_scc1 {l}')
            for op in check_ops(g): e(op)
            e(f's_cbranch_vccnz {l}')
            e(f's_bitset0_b32 {s_mask}, {g}')
            for mf in grp_mfs(g): e(mf)
            e.place(l)
        e(f's_cmp_lg_u32 {s_mask}, 0\n s_cbranch_scc1 {lfix}\n s_nop 15')
        if early_fin:
            for q in range(4): e(fwr[q])
        e(f's_branch {ldone}')
    slow.append(ofix)
    stamp()
    if not early_fin:
        for q in range(4):
            e(f'ds_write_b128 v{vFw}, {vr(ACC+16+q*4,4)} offset:{FSCR+q*1024}')
    e('s_waitcnt lgkmcnt(0)')
    e('s_barrier')
    OT = 48
    for q in range(4):
        e(f'ds_read_b128 {vr(OT+q*4,4)}, v46 offset:{FSCR+q*1024}')
    for p in range(2):
        for i in range(p*8, p*8+8, 2):
            e(f'v_pk_add_f32 {vr(ACC+i,2)}, {vr(ACC+i,2)}, {vr(OT+i,2)} neg_lo:[0,1] neg_hi:[0,1]')
            e(f'v_pk_fma_f32 {vr(ACC+i,2)}, {vr(ACC+i,2)}, v[44:45], {vr(OT+i,2)}')
            e(f'v_cvt_pk_bf16_f32 v{T+i//2}, v{ACC+i}, v{ACC+i+1}')
        e(f'v_permlane32_swap_b32 v{T+p*4}, v{T+p*4+2}')
        e(f'v_permlane32_swap_b32 v{T+p*4+1}, v{T+p*4+3}')
        if x_full:
            if p == 0:
                e(f'v_lshrrev_b32 v47, 7, v{vL16}\n v_lshlrev_b32 v47, 10, v47\n v_and_b32 v30, 127, v{vL16}\n v_add_u32 v47, v47, v30\n s_lshl_b32 {s_t}, {rh}, 6\n s_sub_u32 {s_out}, {s_out}, {s_t}\n s_lshl_b32 {s_t}, {rh}, 14\n s_add_u32 {s_out}, {s_out}, {s_t}')
            else:
                e(f's_add_u32 {s_out}, {s_out}, 8192')
            e(f'buffer_store_dwordx4 {vr(T+p*4,4)}, v47, {OUT}, {s_out} offen {out_mod}')
        else:
            e(f'buffer_store_dwordx4 {vr(T+p*4,4)}, v{vOut}, {OUT}, {s_out} offen offset:{32*p} {out_mod}')
    stamp()
    if amp >= 0:
        e('s_waitcnt vmcnt(0)')
        stamp()
        e(f'''
        s_memrealtime s[60:61]
        s_waitcnt lgkmcnt(0)
        s_sub_u32 s57, s{70+2*amp}, s70
        s_mul_i32 s57, s57, 10
        s_min_u32 s57, s57, 100000
        s_add_u32 s57, s57, s60
        L_amp:
        s_memrealtime s[60:61]
        s_waitcnt lgkmcnt(0)
        s_sub_u32 s58, s60, s57
        s_cmp_lt_i32 s58, 0
        s_cbranch_scc1 L_amp
        ''')
    elif stamps:
        e('s_waitcnt vmcnt(0)')
        stamp()
        e(f'''
        s_waitcnt lgkmcnt(0)
        s_cmp_lg_u32 s3, {stamps-1}
        s_cbranch_scc1 L_end
        s_add_u32 s4, s4, {STAMP_OFF}
        s_addc_u32 s5, s5, 0
        s_lshl_b32 s57, s2, 7
        v_mov_b32 v10, s57
        ''')
        for s in range(16):
            if s >= nst[0]:
                e(f'v_mov_b32 v12, {s_spin}\n v_mov_b32 v13, 0')
            else:
                e(f'v_mov_b32 v12, s{70+2*s}\n v_mov_b32 v13, s{71+2*s}')
            e(f'global_store_dwordx2 v10, v[12:13], s[4:5] offset:{8*s}')
            e('s_nop 1')
    e('L_end:')
    e('s_endpgm')
    for s in slow:
        e.hist = []; e.vm = []; e.lg = []
        s()
    e.raw('.p2align 8\n.fill 4608, 4, 0xbf810000')
    print('instr counts', e.count, 'nops', e.nops, 'stamps', nst[0], 't0 at', t0[0], 'early', n_early, 'mid', n_mid, 'phi', nphi, 'late', nlate, file=sys.stderr)
    txt = e.text()
    if al:
        from align import align
        txt, nc, nn = align(txt, al)
        print('aligned: conv', nc, 'nops', nn, file=sys.stderr)
    return kernel_file(txt, 256, 256, 163840, vgpr=512, accum=256, pad=pad)

def multi(prefix, variants, base, g=None):
    names = []
    for nm, kw in variants:
        fn = f'mb/{prefix}_{nm}.s'
        d = dict(base); d.update(kw)
        open('code/' + fn, 'w').write((g or gen)(**d))
        names.append(fn)
    print(' '.join(names)); print(str(names).replace("'", '"'))

if __name__ == '__main__':
    open('cdna_kernels/' + NAME + '.s', 'w').write(gen())
    multi('k10', [('a', {}), ('pf1', dict(pf3=1)), ('pf2', dict(pf3=2))], dict(stamps=1))
```

```python
import gen10
from asmlib import NAME
src = gen10.gen()
doc = """; ---------------------------------------------------------------------------------------------
; ---------------------------------------------------------------------------------------------
"""
i = src.index('.amdgcn_target')
src = src[:i] + doc + src[i:]
open('cdna_kernels/' + NAME + '.s', 'w').write(src)
```

```python
import sys
from asmlib import *
from emit import Emit

O_OFF = 0
P_OFF = 0x400000
Z_OFF = 0x480000
G_OFF = 0x4a0000
F_OFF = 0x4c0000
F1_OFF = 0x4c8000
SPILL = 0x500000 + 128
WS_BYTES = 0xa00000
STAMP_OFF = 0x8000000
S0, S1, S2 = 0, 32768, 65536
WQ = 98304
CSLOT = [S0, S1, S2, WQ, WQ + 32768, S0, S1, S2]
GWL = WQ + 65536 - 1024
KVSCR = S0
ZSCR = S0 + 8192
GXSCR = S0
FSCR = S0
WOG = [S0 + 16384, S1, S1 + 16384, S2, S2 + 16384, WQ, WQ + 16384, WQ + 32768]
LOG2E = 0x3fb8aa3b
EPS = 0x358637bd
MF, SKIP = 'MF', 'SKIP'

def vr(b, n=1):
    return f'v{b}' if n == 1 else f'v[{b}:{b+n-1}]'
def ar(b, n=1):
    return f'a{b}' if n == 1 else f'a[{b}:{b+n-1}]'
def lines(t):
    return [l.strip() for l in t.split('\n') if l.strip()]

def gen(stamps=0, MAXSPIN=1 << 16, cyc=False, amp=-1, budget=30, gdelay=32, wo_gap=2, gpause=14, wo_max=99,
        oahead=3, ramp_ks=8, look=3, e1_lead=64, midq=34, phi_max=99, out_mod='', rd_pre=999, ost_wait=True, wo_tail=1,
        merge=False, x_nowo=False, per_dma=12, flag_bar=5, nweave=0, x16='', wq_e1=0, e1_step=8, poison_first=False, kv_pace=2, early_fin=True, ws_base=0, tlb=0, rot=12, lag3=0, skip3=False, jitter=0, al=0, x_nopoi=False, tailw=0, gs=4, g0_pos=4, we_from=99, we_to=0, tail_from=28, pre_x=0, pad=4096-0x300, wtouch=0, iwarm=False, x_full=False, pf3=0, zoom=False, wo_stop=64, wo_afterbgx=0, nonce_bar=2, opro=0):
    e = Emit()
    nst = [0]
    issued = e.issued
    def stamp(z=False):
        if stamps and nst[0] < 13 and (z == zoom or nst[0] == 0):
            i = nst[0]; nst[0] += 1
            e(f'{"s_memtime" if cyc else "s_memrealtime"} s[{70+2*i}:{71+2*i}]')
    def jit(k):
        if not jitter: return
        lab = e.label('L_jit'); l2 = e.label('L_jite')
        e(f'''
        s_memtime s[92:93]
        s_waitcnt lgkmcnt(0)
        s_mul_i32 s94, s2, {37 + 2*k}
        s_add_u32 s94, s94, s92
        s_lshr_b32 s94, s94, 3
        s_and_b32 s94, s94, {jitter}
        s_cmp_lt_u32 s94, {jitter*3//4}
        s_cbranch_scc1 {l2}
        {lab}:
        s_sleep 8
        s_sub_u32 s94, s94, 1
        s_cmp_gt_u32 s94, {jitter*3//4}
        s_cbranch_scc1 {lab}
        {l2}:
        ''')
    def run(x):
        e(x) if isinstance(x, str) else x()
    X, W, WO, WS, OUT, DBG, GW = 's[8:11]', 's[12:15]', 's[16:19]', 's[20:23]', 's[24:27]', 's[28:31]', 's[32:35]'
    s_r, s_c, s_R64, s_C64 = 's36', 's37', 's38', 's39'
    s_xbase, s_wbase, s_F = 's40', 's41', 's42'
    s_xs, s_ws_ = 's43', 's44'
    s_w4k, s_w2k, s_out = 's45', 's46', 's47'
    s_m16, s_l2e, s_eps = 's[48:49]', 's[50:51]', 's52'
    s_P, s_Z, s_O, s_G = 's53', 's54', 's55', 's56'
    s_t, s_t2, s_spin, s_wos, s_O2 = 's57', 's58', 's59', 's60', 's61'
    s_Pg, s_Zg, s_Og, s_Gg = 's62', 's63', 's64', 's65'
    ch, rh = 's66', 's67'
    s_hm, s_rhm = 's[6:7]', 's[96:97]'
    s_rq, s_mask, s_rw, s_ro = 's98', 's99', 's100', 's101'
    vF2a = 0; vZld = 2; vGo = 3; vN = 4
    vX = 8; vW = 12; vL16 = 16; vFa = 17
    vXA = 18; vWA = 30; vGA = 33; vGacc = 36; vGt = 37; vZero = 39; vGW = 40
    accK = 48; accV = 80; Wf = 112
    vO = 128; vOA = 132; vOut = 138; vFw = 139; vSw = 140; vSr = 141; vZw = 142; vZr = 143
    accQ = 144; GA = 176
    PK = 176; VF = 192; D = 208; DZ = 224; ONES = 240
    T = 244; SEL = 252
    vFl = 40; vGv = 42; vGo2 = 43
    vLX = 1 if skip3 else 16
    A0, A1, A2, A3, B0, B1, B2, vGWa = 192, 193, 194, 195, 196, 197, 198, 199

    if rot == 7:
        rotcode = f's_lshr_b32 {s_rq}, s2, 1\n s_add_u32 {s_rq}, {s_rq}, {s_r}\n s_and_b32 {s_rq}, {s_rq}, 3\n s_lshl_b32 {s_rq}, {s_rq}, 1'
    elif rot == 8:
        rotcode = f's_and_b32 {s_rq}, s2, 6\n s_add_u32 {s_rq}, {s_rq}, {s_r}\n s_and_b32 {s_rq}, {s_rq}, 7'
    elif rot == 12:
        rotcode = f's_lshl_b32 {s_rq}, {s_r}, 1\n s_add_u32 {s_rq}, {s_rq}, s2\n s_and_b32 {s_rq}, {s_rq}, 7'
    elif rot == 13:
        rotcode = f's_lshl_b32 {s_rq}, {s_r}, 1\n s_add_u32 {s_rq}, {s_rq}, s2\n s_lshr_b32 s59, s2, 4\n s_and_b32 s59, s59, 4\n s_add_u32 {s_rq}, {s_rq}, s59\n s_and_b32 {s_rq}, {s_rq}, 7'
    elif rot == 14:
        rotcode = f's_lshl_b32 {s_rq}, {s_r}, 1\n s_add_u32 {s_rq}, {s_rq}, s2\n s_lshr_b32 s59, s2, 5\n s_and_b32 s59, s59, 6\n s_add_u32 {s_rq}, {s_rq}, s59\n s_and_b32 {s_rq}, {s_rq}, 7'
    elif rot == 15:
        rotcode = f's_lshl_b32 {s_rq}, {s_r}, 2\n s_add_u32 {s_rq}, {s_rq}, s2\n s_and_b32 {s_rq}, {s_rq}, 7'
    elif rot == 16:
        rotcode = f's_lshr_b32 s59, s2, 5\n s_and_b32 s59, s59, 6\n s_lshr_b32 {s_rq}, s2, 1\n s_and_b32 {s_rq}, {s_rq}, 1\n s_add_u32 {s_rq}, {s_rq}, s59\n s_lshl_b32 s59, s2, 2\n s_add_u32 {s_rq}, {s_rq}, s59\n s_and_b32 {s_rq}, {s_rq}, 7'
    if lag3:
        rotcode += f'\n s_and_b32 s59, s2, 0xc2\n s_cmp_eq_u32 s59, 0xc0\n s_cselect_b32 s59, {lag3}, 0\n s_sub_u32 {s_rq}, {s_rq}, s59\n s_and_b32 {s_rq}, {s_rq}, 7'
    stamp()
    e(f'''
    s_load_dwordx4 s[4:7], s[0:1], 0
    s_load_dwordx4 s[64:67], s[0:1], 32
    s_load_dwordx4 s[32:35], s[0:1], 48
    s_load_dwordx2 s[16:17], s[0:1], 16
    s_load_dwordx4 s[28:31], s[0:1], 64
    s_memrealtime s[68:69]
    s_cmp_ge_u32 s2, 256
    s_cbranch_scc1 L_end
    v_lshrrev_b32 v{A0}, 6, v0
    s_getpc_b64 s[60:61]
    v_readfirstlane_b32 s3, v{A0}
    s_lshr_b32 s58, s2, 3
    s_lshl_b32 s57, s58, 9
    v_lshl_add_u32 v{B0}, v{A0}, 7, s57
    v_and_b32 v{B2}, 1, v0
    v_lshl_add_u32 v{B0}, v{B2}, 14, v{B0}
    ''')
    e(f'global_load_dword v{B1}, v{B0}, s[60:61]', tag='kv0')
    e(f'''
    v_and_b32 v1, 63, v0
    s_and_b32 s36, s2, 1
    s_lshl_b32 s36, s36, 3
    s_and_b32 s37, s58, 7
    s_add_u32 s36, s36, s37
    v_lshrrev_b32 v{A0}, 3, v1
    v_lshrrev_b32 v{A1}, 4, v1
    v_and_b32 v{A2}, 7, v1
    v_xor_b32 v{A3}, v{A2}, v{A1}
    v_lshlrev_b32 v{A3}, 4, v{A3}
    v_lshl_add_u32 v{vX}, v{A0}, 10, v{A3}
    v_xor_b32 v{B2}, 64, v{vX}
    v_add_u32 v{vX+1}, {8192-1024}, v{B2}
    v_add_u32 v{vX+2}, {2*(8192-1024)}, v{vX}
    v_add_u32 v{vX+3}, {3*(8192-1024)}, v{B2}
    s_lshl_b32 {s_w4k}, s3, 12
    s_lshl_b32 {s_xbase}, {s_r}, 17
    s_lshl_b32 {s_t}, s3, 15
    s_add_u32 {s_xbase}, {s_xbase}, {s_t}
    s_mov_b32 m0, {s_w4k}
    {rotcode}
    s_lshl_b32 s59, {s_rq}, 7
    s_add_u32 {s_xs}, s59, {s_xbase}
    s_mov_b32 s10, 0x200000
    s_mov_b32 s11, 0x20000
    ''')
    e('s_waitcnt lgkmcnt(0)')
    stamp()
    jit(0)
    e('s_mov_b32 s8, s4\n s_mov_b32 s9, s5')
    if wtouch:
        e(f's_bitcmp1_b32 s2, 2\n s_cselect_b32 s12, s64, s6\n s_cselect_b32 s13, s65, s7\n v_mov_b32 v{vZero}, 0')
        e(f'global_load_dword v201, v{vZero}, s[12:13]', tag='tch')
        if wtouch > 1:
            e(f'global_load_dword v202, v{vZero}, s[32:33]', tag='tch')
            e(f'global_load_dword v203, v{vZero}, s[30:31]', tag='tch')
    def adv():
        e(f's_add_u32 {s_rq}, {s_rq}, 1\n s_and_b32 {s_rq}, {s_rq}, 7')
    def x_dma_ops(j):
        sl = CSLOT[j]
        def mk(i):
            def f():
                if j > 0 and i == 0:
                    e(f's_add_u32 m0, {s_w4k}, {sl}\n s_lshl_b32 {s_xs}, {s_rq}, 7\n s_add_u32 {s_xs}, {s_xs}, {s_xbase}')
                e(f'buffer_load_dwordx4 v{vX+i}, {X}, {s_xs} offen offset:{1024*i} lds', tag=f'kv{j}')
                if i == 2 and j > 0:
                    e(f's_mul_i32 {s_ws_}, {s_rq}, {64*3072}\n s_add_u32 {s_ws_}, {s_ws_}, {s_wbase}')
                if i == 3:
                    e(f's_add_u32 m0, {s_w4k}, {sl+16384}')
            return f
        return [mk(i) for i in range(4)]
    def w_dma_ops(j):
        def mk(i):
            def f():
                e(f'buffer_load_dwordx4 v{vW+i}, {W}, {s_ws_} offen offset:{1024*i} lds', tag=f'kv{j}')
                if i == 1: adv()
            return f
        return [mk(i) for i in range(4)]
    def wq_dma_ops(j):
        def f0():
            e(f's_add_u32 m0, {s_w2k}, {j*8192}\n s_mul_i32 {s_ws_}, {s_rq}, {64*3072}\n s_add_u32 {s_ws_}, {s_ws_}, {s_wbase}')
            e(f'buffer_load_dwordx4 v{vW+2}, {W}, {s_ws_} offen lds', tag='wq')
        def f1():
            e(f'buffer_load_dwordx4 v{vW+3}, {W}, {s_ws_} offen offset:1024 lds', tag='wq')
            if j < 7: adv()
        return [f0, f1]
    def wo_dma_ops(g):
        def mk(t):
            def f():
                if t == 0:
                    e(f's_add_u32 m0, {s_w4k}, {WOG[g]}\n s_add_u32 {s_t2}, {s_wos}, {s_rw}')
                if not x_nowo: e(f'buffer_load_dwordx4 v{vO+t}, {WO}, {s_t2} offen offset:{1024*t} lds', tag=f'wo{g}')
                if t == 3 and g < 7:
                    e(f's_add_u32 {s_rw}, {s_rw}, 65536\n s_and_b32 {s_rw}, {s_rw}, 0x7ffff')
            return f
        return [mk(t) for t in range(4)]
    wset = lines(f'''
    s_and_b32 s37, s2, 6
    s_lshl_b32 s37, s37, 1
    s_lshr_b32 s38, s58, 3
    s_add_u32 s37, s37, s38
    v_and_b32 v{A3}, 1, v{A1}
    v_lshlrev_b32 v{A3}, 2, v{A3}
    v_xor_b32 v{A3}, v{A3}, v{A2}
    v_lshlrev_b32 v{A3}, 4, v{A3}
    v_mul_u32_u24 v{B2}, 3072, v{A0}
    v_add_u32 v{vW+2}, v{B2}, v{A3}
    v_add_u32 v{vW+0}, 1024, v{vW+2}
    v_add_u32 v{vW+1}, 24576, v{vW+2}
    v_add_u32 v{vW+3}, 23552, v{vW+2}
    s_and_b32 {s_wbase}, {s_c}, 7
    s_lshl_b32 {s_wbase}, {s_wbase}, 7
    s_mul_i32 {s_t}, s3, {16*3072}
    s_add_u32 {s_wbase}, {s_wbase}, {s_t}
    s_mov_b32 s14, 0x180000
    s_mov_b32 s15, 0x20000
    s_mul_i32 {s_ws_}, {s_rq}, {64*3072}
    s_add_u32 {s_ws_}, {s_ws_}, {s_wbase}
    ''')
    pre = lines(f"""
    s_and_b32 {ch}, s3, 1
    s_lshr_b32 {rh}, s3, 1
    """)
    pre += lines(f'''
    v_lshrrev_b32 v{A1}, 5, v1
    v_and_b32 v{A0}, 31, v1
    s_lshl_b32 {s_t}, {rh}, 13
    v_lshl_add_u32 v{A2}, v{A0}, 7, {s_t}
    v_bfe_u32 v{A3}, v1, 1, 3
    v_xor_b32 v{A3}, v{A3}, v{A1}
    ''')
    for t in range(4):
        pre += [f'v_xor_b32 v{B2}, {2*t}, v{A3}', f'v_lshl_add_u32 v{vXA+3*t}, v{B2}, 4, v{A2}']
    pre += lines(f'''
    v_bfe_u32 v{A3}, v1, 2, 2
    v_lshlrev_b32 v{A2}, 7, v{A3}
    v_bfe_u32 v{A3}, v1, 4, 1
    v_lshl_add_u32 v{A2}, v{A3}, 5, v{A2}
    v_and_b32 v{A3}, 3, v1
    v_lshl_add_u32 v{A2}, v{A3}, 3, v{A2}
    v_bfe_u32 v{A3}, v1, 3, 1
    v_xor_b32 v{B2}, {ch}, v{A3}
    v_lshl_add_u32 v{B2}, v{B2}, 6, v{A2}
    v_lshl_add_u32 v{vWA}, v{A1}, 10, v{B2}
    v_xor_b32 v{B2}, {rh}, v{A3}
    v_lshl_add_u32 v{B2}, v{B2}, 6, v{A2}
    v_lshl_add_u32 v{B2}, v{A1}, 9, v{B2}
    v_add_u32 v{vOA}, {s_t}, v{B2}
    s_lshl_b32 {s_t}, {s_c}, 3
    s_lshl_b32 {s_t2}, s3, 1
    s_add_u32 {s_t}, {s_t}, {s_t2}
    v_add_u32 v{A2}, {s_t}, v{A1}
    v_bfe_u32 v{A3}, v{A2}, 1, 3
    v_bfe_u32 v{B2}, v1, 2, 3
    v_xor_b32 v{A3}, v{A3}, v{B2}
    v_lshlrev_b32 v{A3}, 4, v{A3}
    v_lshl_add_u32 v{A3}, v{A2}, 7, v{A3}
    v_and_b32 v{B2}, 3, v1
    v_lshl_add_u32 v{vGA}, v{B2}, 2, v{A3}
    v_lshlrev_b32 v{vGWa}, 2, v{A0}
    v_add_u32 v{vGWa}, {GWL}, v{vGWa}
    v_mov_b32 v{vGacc}, 0
    ''')
    U0, U1, U2 = A2, A3, B2
    setup = []
    for t in range(4):
        setup += [f'v_add_u32 v{vXA+3*t+1}, 65536, v{vXA+3*t}', f'v_add_u32 v{vXA+3*t+2}, 131072, v{vXA+3*t}']
    setup += lines(f'''
    v_add_u32 v{vWA+1}, 65536, v{vWA}
    v_add_u32 v{vWA+2}, 131072, v{vWA}
    v_add_u32 v{vGA+1}, 65536, v{vGA}
    v_add_u32 v{vGA+2}, 131072, v{vGA}
    s_lshl_b32 {s_w2k}, s3, 11
    s_add_u32 {s_w2k}, {s_w2k}, {WQ}
    s_mov_b32 s18, 0x80000
    s_mov_b32 s19, 0x20000
    s_mov_b32 s22, {WS_BYTES}
    s_mov_b32 s23, 0x20000
    s_mov_b32 s26, 0x200000
    s_mov_b32 s27, 0x20000
    s_lshr_b32 s58, s2, 3
    s_and_b32 s57, s2, 7
    s_lshl_b32 s38, s57, 2
    s_and_b32 s39, s58, 3
    s_add_u32 s38, s38, s39
    s_lshl_b32 {s_ro}, s39, 13
    s_lshl_b32 {s_rw}, s39, 17
    s_lshr_b32 s39, s58, 2
    s_mov_b32 s48, 0xffff0000
    s_mov_b32 s49, 0xffff0000
    s_mov_b32 s50, {LOG2E}
    s_mov_b32 s51, {LOG2E}
    s_mov_b32 {s_eps}, {EPS}
    s_mov_b32 {s_spin}, 0
    s_lshl_b32 {s_t2}, {s_c}, 1
    s_add_u32 {s_t}, {ch}, {s_t2}
    s_lshl_b32 {s_Pg}, {s_t}, 14
    s_add_u32 {s_Pg}, {s_Pg}, {P_OFF}
    s_lshl_b32 {s_P}, {s_r}, 10
    s_add_u32 {s_P}, {s_P}, {s_Pg}
    s_lshl_b32 {s_t2}, {rh}, 13
    s_add_u32 {s_Pg}, {s_Pg}, {s_t2}
    s_lshl_b32 {s_t}, {s_t}, 1
    s_add_u32 {s_t}, {s_t}, {rh}
    s_lshl_b32 {s_Zg}, {s_t}, 11
    s_add_u32 {s_Zg}, {s_Zg}, {Z_OFF}
    s_lshl_b32 {s_Z}, {s_r}, 7
    s_add_u32 {s_Z}, {s_Z}, {s_Zg}
    s_lshl_b32 {s_O}, {s_r}, 1
    s_add_u32 {s_O}, {s_O}, {rh}
    s_lshl_b32 {s_O}, {s_O}, 17
    s_lshl_b32 {s_t}, {s_c}, 12
    s_add_u32 {s_O}, {s_O}, {s_t}
    s_lshl_b32 {s_t}, {ch}, 11
    s_add_u32 {s_O}, {s_O}, {s_t}
    s_add_u32 {s_O2}, {s_O}, 65536
    s_lshl_b32 {s_G}, {s_r}, 13
    s_lshl_b32 {s_t}, {s_c}, 9
    s_add_u32 {s_G}, {s_G}, {s_t}
    s_lshl_b32 {s_t}, s3, 7
    s_add_u32 {s_G}, {s_G}, {s_t}
    s_add_u32 {s_G}, {s_G}, {G_OFF}
    s_lshl_b32 {s_F}, {s_r}, 4
    s_add_u32 {s_F}, {s_F}, {s_c}
    s_lshl_b32 {s_F}, {s_F}, 7
    s_add_u32 {s_F}, {s_F}, {F_OFF}
    s_sub_u32 s7, 0, {rh}
    s_not_b32 s6, s7
    s_mov_b32 s96, s7
    s_mov_b32 s97, s7
    v_mov_b32 v{T}, -1
    v_mov_b32 v{T+1}, -1
    v_mov_b32 v{T+2}, -1
    v_mov_b32 v{T+3}, -1
    v_add_u32 v{vO+1}, {16384-1024}, v{vO}
    v_add_u32 v{vO+2}, {2*(16384-1024)}, v{vO}
    v_add_u32 v{vO+3}, {3*(16384-1024)}, v{vO}
    v_add_u32 v{vOA+1}, 65536, v{vOA}
    v_add_u32 v{vOA+2}, 131072, v{vOA}
    v_xor_b32 v{vOA+3}, 64, v{vOA}
    v_xor_b32 v{vOA+4}, 64, v{vOA+1}
    v_xor_b32 v{vOA+5}, 64, v{vOA+2}
    v_lshlrev_b32 v{vOut}, 10, v{A0}
    v_lshl_add_u32 v{vOut}, v{A1}, 4, v{vOut}
    v_and_b32 v{A2}, 48, v1
    v_and_b32 v{A0}, 15, v1
    v_lshl_add_u32 v{vZld}, v{A0}, 7, v{A2}
    s_lshl_b32 {s_t}, s3, 7
    s_add_u32 {s_t}, {s_t}, {ZSCR}
    v_add_u32 v{vZw}, {s_t}, v{A2}
    v_and_b32 v{A2}, 3, v1
    s_lshl_b32 {s_t}, {ch}, 7
    s_lshl_b32 {s_t2}, {rh}, 6
    s_add_u32 {s_t}, {s_t}, {s_t2}
    s_add_u32 {s_t}, {s_t}, {ZSCR}
    v_lshl_add_u32 v{vZr}, v{A2}, 4, {s_t}
    v_lshlrev_b32 v{vGo}, 6, v{A1}
    v_lshl_add_u32 v{vGo}, v{A2}, 4, v{vGo}
    s_lshl_b32 {s_t}, {s_c}, 7
    s_add_u32 {s_t}, {s_t}, {F1_OFF}
    v_lshl_add_u32 v{vFa}, v{A0}, 11, {s_t}
    s_lshr_b32 {s_t}, {s_R64}, 1
    s_lshl_b32 {s_t}, {s_t}, 11
    s_add_u32 {s_t}, {s_t}, {F_OFF}
    v_lshl_add_u32 v{vF2a}, v{A0}, 7, {s_t}
    v_mov_b32 v{ONES}, 0x3f803f80
    v_mov_b32 v{ONES+1}, 0x3f803f80
    v_mov_b32 v{ONES+2}, 0x3f803f80
    v_mov_b32 v{ONES+3}, 0x3f803f80
    s_lshl_b32 {s_wos}, {s_C64}, 7
    s_lshl_b32 {s_t}, {ch}, 13
    s_add_u32 {s_wos}, {s_wos}, {s_t}
    s_lshl_b32 {s_Og}, {s_R64}, 1
    s_add_u32 {s_Og}, {s_Og}, {ch}
    s_lshl_b32 {s_Gg}, {s_Og}, 11
    s_add_u32 {s_Gg}, {s_Gg}, {G_OFF+48}
    s_lshl_b32 {s_out}, {s_Og}, 15
    s_lshl_b32 {s_Og}, {s_Og}, 16
    s_lshl_b32 {s_t2}, {rh}, 15
    s_add_u32 {s_Og}, {s_Og}, {s_t2}
    s_lshl_b32 {s_t}, {s_C64}, 7
    s_add_u32 {s_out}, {s_out}, {s_t}
    s_lshl_b32 {s_t}, {rh}, 6
    s_add_u32 {s_out}, {s_out}, {s_t}
    v_add_u32 v{vFw}, {s_w4k}, v{vL16}
    s_lshl_b32 {s_t}, s3, 11
    v_add_u32 v{vSw}, {s_t}, v{vL16}
    v_xor_b32 v{vSr}, 4096, v{vSw}
    v_bfe_u32 v{U0}, v1, 3, 1
    v_and_b32 v{U1}, 3, v1
    v_lshl_add_u32 v{U0}, v{U0}, 2, v{U1}
    v_and_b32 v{U1}, 1, v{U0}
    v_lshlrev_b32 v{U1}, 4, v{U1}
    v_mov_b32 v{U2}, 0x3f80
    v_lshlrev_b32 v{U1}, v{U1}, v{U2}
    v_bfe_u32 v{U2}, v1, 2, 1
    v_lshlrev_b32 v{U2}, 5, v{U2}
    v_xor_b32 v{U2}, v{U2}, v1
    v_and_b32 v{U2}, 48, v{U2}
    v_lshrrev_b32 v{U0}, 1, v{U0}
    v_or_b32 v{U0}, v{U0}, v{U2}
    ''')
    for jj in range(4):
        setup += [f'v_cmp_eq_u32 vcc, {jj}, v{U0}', f'v_cndmask_b32 v{SEL+jj}, 0, v{U1}, vcc']
    if skip3:
        setup += [f'v_lshrrev_b32 v{U0}, 3, v1', f'v_add_u32 v{U1}, {SPILL}, v{vL16}', f'v_cmp_eq_u32 vcc, 3, v{U0}', f'v_cndmask_b32 v1, v{vL16}, v{U1}, vcc']
    def o_store(rt, hd, reg, tag='ost'):
        e(f'buffer_store_dwordx4 {vr(reg,4)}, v{vLX}, {WS}, {s_O if rt == 0 else s_O2} offen offset:{1024*hd} sc1', tag=tag)
    def pz_store(preg, zreg, tag):
        e(f's_mov_b64 exec, {s_hm}')
        e(f'buffer_store_dwordx4 {vr(preg,4)}, v{vLX}, {WS}, {s_P} offen sc1', tag=tag)
        e('s_mov_b64 exec, 0xff')
        e(f'buffer_store_dwordx4 {vr(zreg,4)}, v{vL16}, {WS}, {s_Z} offen sc1', tag=tag)
    def g_store():
        e('s_mov_b32 exec_lo, 0xf0000000\n s_mov_b32 exec_hi, 0xf0000000')
        e(f'buffer_store_dwordx4 {vr(vGacc,4)}, v{vGo}, {WS}, {s_G} offen sc1', tag='poi')
        e('s_mov_b64 exec, -1')
    for f in x_dma_ops(0):
        f()
        for _ in range(6):
            if wset: e(wset.pop(0))
    e(f's_cmp_ge_u32 {s_c}, 8\n s_cselect_b32 s12, s64, s6\n s_cselect_b32 s13, s65, s7')
    mid_ = lines(f"""
    v_lshlrev_b32 v{vL16}, 4, v1
    s_mov_b32 s24, s34
    s_mov_b32 s25, s35
    s_mov_b32 s34, 1024
    s_mov_b32 s35, 0x20000
    v_add_u32 v{B0}, s59, v{vL16}
    v_and_b32 v{B0}, 1023, v{B0}
    v_lshl_add_u32 v{vO}, v{A0}, 10, v{A3}
    s_cmp_ge_u32 s3, 2 @ s_cselect_b32 s16, s66, s16 @ s_cselect_b32 s17, s67, s17
    s_add_u32 s20, s30, {ws_base} @ s_addc_u32 s21, s31, 0
    s_mov_b32 s4, s30
    s_mov_b32 s5, s31
    s_mov_b32 s30, 256
    s_mov_b32 s31, 0x20000
    v_mov_b32 v{vZero}, 0
    """)
    def nonce_pub():
        lab = e.label('L_nn')
        e(f"""
        s_or_b32 {s_t}, s2, s3
        s_cmp_lg_u32 {s_t}, 0
        s_cbranch_scc1 {lab}
        s_or_b32 s68, s68, 1
        v_mov_b32 v{vN}, s68
        v_mov_b32 v{vN+1}, s69
        s_mov_b64 exec, 1
        """)
        e(f'buffer_store_dwordx2 {vr(vN,2)}, v{vZero}, {DBG}, 0 offen sc1', count=False)
        e(f's_mov_b64 exec, -1')
        e.place(lab)
    early = []
    if opro:
        keys = (f's_mov_b32 s22,', f's_mov_b32 s23,', f'v_mov_b32 v{T},', f'v_mov_b32 v{T+1},', f'v_mov_b32 v{T+2},', f'v_mov_b32 v{T+3},')
        i0_ = setup.index(f's_lshl_b32 {s_O}, {s_r}, 1'); i1_ = setup.index(f's_add_u32 {s_O2}, {s_O}, 65536')
        early = setup[i0_:i1_ + 1]
        setup = setup[:i0_] + setup[i1_ + 1:]
        early += [x for x in setup if x.startswith(keys)]
        setup = [x for x in setup if not x.startswith(keys)]
    todo = [x.replace('@', '\n') for x in mid_] + pre[:2] + early + [nonce_pub] + pre[2:] + setup[:len(setup) - nweave]
    opq = [lambda rt=rt, hd=hd: o_store(rt, hd, T, 'poi') for rt in range(2) for hd in range(2)]
    setup = setup[len(setup) - nweave:]
    def some(k):
        for _ in range(k):
            if todo: run(todo.pop(0))
    for f in w_dma_ops(0):
        f(); some(per_dma)
    e(f's_mov_b32 m0, {GWL}')
    some(2)
    e(f'buffer_load_dwordx4 v{B0}, {GW}, 0 offen lds', tag='kv0')
    some(per_dma)
    for _ in range({1: 4, 3: 2}.get(opro, 0)):
        opq.pop(0)(); some(per_dma)
    for f in x_dma_ops(1) + w_dma_ops(1):
        f(); some(per_dma)
    def pf3_touch():
        lab = e.label('L_p3')
        e(f'''
        s_and_b32 {s_t}, s2, 0xc2
        s_cmp_ge_u32 {s_t}, 0xc0
        s_cbranch_scc1 {lab}
        s_bitcmp1_b32 s2, 1
        s_cbranch_scc1 {lab}
        s_lshr_b32 {s_t}, s2, 3
        s_lshl_b32 {s_t}, {s_t}, 2
        s_add_u32 {s_t}, {s_t}, s3
        s_lshl_b32 {s_t}, {s_t}, 10
        s_add_u32 {s_t}, {s_t}, 384
        v_mul_u32_u24 v204, {96*64}, v{vL16}
        s_mov_b64 exec, 0xffff
        ''')
        e(f'buffer_load_dword v205, v204, {W}, {s_t} offen', count=False)
        e('s_mov_b64 exec, -1')
        e.place(lab)
    some(999)
    if opro in (2, 3):
        while opq: opq.pop(0)()
    if opro == 4:
        opq.pop(0)(); opq.pop(0)()
    if pf3 == 1: pf3_touch()
    if tlb:
        e('s_mov_b64 exec, 1')
        lst = [(OUT, s_out), (WO, s_wos), (WS, s_Og), (WS, s_O)]
        if tlb > 1: lst += [(WS, s_O2), (WS, s_Pg), (WS, s_Gg), (WS, s_F)]
        for i_, (srd, so) in enumerate(lst):
            e(f'buffer_load_dword v{200+i_}, v{vZero}, {srd}, {so} offen', tag='tlb')
        e('s_mov_b64 exec, -1')
    pz_store(T, T, 'pst0'); e('s_mov_b64 exec, -1')
    def lds(base, addr):
        return base + (addr >> 16), addr & 0xffff
    def kv_reads(ks):
        j, t = divmod(ks, 4)
        sl = CSLOT[j]
        buf = Wf + (ks % 2) * 8
        ops = []
        for sec in range(2):
            r, o = lds(vXA + 3*t, sl + sec * 4096)
            ops.append(f'ds_read_b128 {ar(ks*8 + sec*4, 4)}, v{r} offset:{o}')
        for sec in range(2):
            for hf in range(2):
                r, o = lds(vWA, sl + 16384 + t * 4096 + sec * 2048 + hf * 512)
                ops.append(f'ds_read_b64_tr_b16 {vr(buf + sec*4 + hf*2, 2)}, v{r} offset:{o}')
        if t == 0:
            r, o = lds(vGA, sl)
            ops.append(f'ds_read_b32 v{vGt + (j & 1)}, v{r} offset:{o}')
        if ks in (1, 2):
            for q in range(2):
                qq = (ks - 1) * 2 + q
                ops.append(f'ds_read2_b32 {vr(vGW + 2*qq, 2)}, v{vGWa} offset0:{qq*64} offset1:{qq*64+32}')
        return ops
    def kv_mfmas(ks):
        buf = Wf + (ks % 2) * 8
        ops = []
        for sec, acc in ((0, accK), (1, accV)):
            for rt in range(2):
                c = '0' if ks == 0 else vr(acc + rt*16, 16)
                if 'k' in x16:
                    t = []
                    for h in range(2):
                        a = acc + ((ks % 2) * 4 + rt * 2 + h) * 4
                        t.append(f'v_mfma_f32_16x16x32_bf16 {vr(a,4)}, {ar(ks*8+h*4,4)}, {vr(buf + sec*4, 4)}, {"0" if ks < 2 else vr(a,4)}')
                    ops.append('\n'.join(t))
                    continue
                ops.append(f'v_mfma_f32_32x32x16_bf16 {vr(acc + rt*16, 16)}, {ar(ks*8 + rt*4, 4)}, {vr(buf + sec*4, 4)}, {c}')
        return ops
    slow = []
    stream = []
    for j in range(2, 8):
        earliest = max(j - look, (j - 4) if j >= 5 else 0, 1 if j == 4 else 0)
        for f in x_dma_ops(j) + w_dma_ops(j): stream.append((earliest, f))
    wq_late = []
    for q in range(8):
        for f in wq_dma_ops(q):
            if q >= 8 - wq_e1: wq_late.append(f)
            else: stream.append((5 if q >= 4 else 4, f))
    nonce_load = f'buffer_load_dwordx4 {vr(vN,4)}, v{vZero}, {DBG}, 0 offen sc1'
    for gI in range(wo_tail):
        ops_ = [(6 if gI == 0 else 7, f) for f in wo_dma_ops(gI)]
        if gI == 0 and g0_pos >= 0:
            stream[48 + g0_pos:48 + g0_pos] = ops_
        else:
            stream.extend(ops_)
    for f in opq:
        stream.append((7, (lambda: issued.__setitem__('poi', issued.get('poi', 0) + 1)) if x_nopoi else f))
    stream.append((7, g_store))
    cur_bar = [-1]
    extra_q = []
    def spin_slow(name, reload, cmp):
        ls = e.label(f'L_{name}s'); lo = e.label(f'L_{name}o')
        e(f'{cmp}\n s_cbranch_vccnz {ls}')
        e.place(lo)
        def s():
            e.place(ls)
            e(f'''
            s_add_u32 {s_spin}, {s_spin}, 1
            s_cmp_gt_u32 {s_spin}, {MAXSPIN}
            s_cbranch_scc1 {lo}
            {reload}
            s_waitcnt vmcnt(0)
            {cmp}
            s_cbranch_vccnz {ls}
            s_branch {lo}
            ''')
        slow.append(s)
    def chunk_barrier(j):
        need = 8 + (2 if j == 0 else 0)
        assert issued.get(f'kv{j}', 0) == need, (j, issued)
        if j == 6: assert not setup
        if j == flag_bar:
            assert issued['nonce'] == 1
            e.wait_tag('nonce')
        e.wait_tag(f'kv{j}', lg=0)
        e('s_barrier')
        if j == 0:
            stamp()
        if j == nonce_bar:
            extra_q.append(lambda: e(nonce_load, tag='nonce'))
            if pf3 == 2: extra_q.append(pf3_touch)
        cur_bar[0] = j
        if j == flag_bar:
            def fl():
                spin_slow('n', nonce_load, f'v_cmp_eq_u32 vcc, 0, v{vN}')
                lf = e.label('L_nf1')
                e(f's_cmp_lg_u32 s3, 0\n s_cbranch_scc1 {lf}\n s_mov_b64 exec, 0xff\n s_add_u32 {s_t}, {s_F}, {F1_OFF - F_OFF}')
                e(f'buffer_store_dwordx4 {vr(vN,4)}, v{vL16}, {WS}, {s_t} offen sc1', count=False)
                e('s_mov_b64 exec, -1')
                e.place(lf)
            extra_q.append(fl)
    g = vGacc
    gate_ops = [f'v_add_f32_dpp v{g}, v{g}, v{g} row_shr:{sh} row_mask:0xf bank_mask:0xf bound_ctrl:0' for sh in (1, 2, 4, 8)]
    gate_ops += [f'v_add_f32_dpp v{g}, v{g}, v{g} row_bcast:15 row_mask:0xa bank_mask:0xf\n v_mul_f32 v{g}, 0xbfb8aa3b, v{g}\n v_exp_f32 v{g}, v{g}',
                 f'v_add_f32 v{g}, 1.0, v{g}\n v_rcp_f32 v{g}, v{g}']
    def issue_one():
        if len(stream) == 1 and gate_ops: return False
        if stream and stream[0][0] <= cur_bar[0]:
            stream.pop(0)[1]()
            return True
        return False
    nsetup = len(setup)
    chunk_barrier(0)
    for op in kv_reads(0): e(op)
    for ks in range(32):
        nxt = ks + 1
        rd = []
        if nxt < 32:
            if nxt % 4 == 0:
                chunk_barrier(nxt // 4)
            rd = kv_reads(nxt)
        mf = kv_mfmas(ks)
        for i in range(4):
            e(mf[i])
            for _ in range(2):
                if rd: e(rd.pop(0))
            kvdone = issued.get('kv7', 0) == 8
            if (i in (1, 3) and not (kvdone and kv_pace == 1 and i == 1)) or (ks < ramp_ks and i == 0) or (ks >= tail_from and len(stream) > 2 * (31 - ks) + (2 if i == 0 else 1)):
                issue_one()
            elif extra_q and i == 2 and not setup:
                extra_q.pop(0)()
            if ks >= 29 and gate_ops: e(gate_ops.pop(0))
            while setup and e.slots < 5:
                e(setup.pop(0))
        while rd: e(rd.pop(0))
        if (ks % 4 == 3 and ks < 28) or ks == 28:
            j = ks // 4
            e(f'v_dot2c_f32_bf16 v{vGacc}, v{vGt + (j & 1)}, v{vGW + j}')
    while issue_one(): pass
    assert not stream
    stamp()
    jit(1)
    def phi_ops(src, n, dst):
        ops = []
        for b in range(0, n, 8):
            for i in range(0, 8, 2):
                ops.append((1, f'v_pk_mul_f32 {vr(T+i,2)}, {vr(src+b+i,2)}, {s_l2e}'))
            for i in range(0, 8, 2):
                ops.append((2, f'v_exp_f32_e64 v{T+i}, v{T+i} clamp'))
                ops.append((2, f'v_exp_f32_e64 v{T+i+1}, v{T+i+1} clamp'))
                ops.append((1, f'v_max_f32 v{src+b+i}, {s_eps}, v{src+b+i}'))
                ops.append((1, f'v_max_f32 v{src+b+i+1}, {s_eps}, v{src+b+i+1}'))
            for i in range(0, 8, 2):
                ops.append((1, f'v_pk_add_f32 {vr(src+b+i,2)}, {vr(src+b+i,2)}, {vr(T+i,2)}'))
            for i in range(0, 8, 2):
                ops.append((1, f'v_cvt_pk_bf16_f32 v{dst+(b+i)//2}, v{src+b+i}, v{src+b+i+1}'))
        return ops
    def dz(q):
        return f'v_mfma_f32_32x32x16_bf16 {vr(DZ,16)}, {vr(PK+q*4,4)}, {vr(ONES,4)}, {"0" if q == 0 else vr(DZ, 16)}'
    def dd(q):
        return f'v_mfma_f32_32x32x16_bf16 {vr(D,16)}, {vr(PK+q*4,4)}, {vr(VF+q*4,4)}, {"0" if q == 0 else vr(D, 16)}'
    def cvtv(q):
        return [(1, f'v_cvt_pk_bf16_f32 v{VF + q*4 + i//2}, v{accV+q*8+i}, v{accV+q*8+i+1}') for i in range(0, 8, 2)]
    fill = []
    for q in range(4):
        blk = phi_ops(accK + q*8, 8, PK + q*4)
        blk = blk[:-4] + cvtv(q) + blk[-4:]
        if q > 0:
            blk = blk[:4] + [(MF, dz(q-1))] + blk[4:8] + [(MF, dd(q-1))] + blk[8:]
        fill += blk
    fill += [(MF, dd(3)), (MF, dz(3)), (SKIP, None)]
    if tailw: fill += [('BUD', tailw), (SKIP, None), (SKIP, None)]
    for j in range(8):
        fill.append((1, f'v_cndmask_b32_e64 v{accK+j}, v{D+j}, v{D+8+j}, {s_m16}'))
        if j % 4 == 3:
            fill.append((2, f'ds_write_b128 v{vSw}, {vr(accK+j-3,4)} offset:{KVSCR + (j//4)*1024}'))
    for j in range(8):
        fill.append((1, f'v_cndmask_b32_e64 v{accK+8+j}, v{DZ+8+j}, v{DZ+j}, {s_m16}'))
        if j % 4 == 3:
            fill.append((2, f'ds_write_b128 v{vZw}, {vr(accK+8+j-3,4)} offset:{(j//4)*64}'))
    R = accV
    def bkv():
        assert issued['poi'] == 5
        if we_to: e.wait_tag('poi', lg=0)
        else: e.wait(vm=0, lg=0)
        e('s_barrier')
        e(f'ds_read_b128 {vr(R,4)}, v{vSr} offset:{KVSCR}')
        e(f'ds_read_b128 {vr(R+4,4)}, v{vSr} offset:{KVSCR+1024}')
        e(f'ds_read_b128 {vr(R+8,4)}, v{vZr}')
        e(f'ds_read_b128 {vr(R+12,4)}, v{vZr} offset:256')
    fill += [(SKIP, None)] * (2 if tailw else 1) + [(1, bkv), (SKIP, None), (SKIP, None)]
    if tailw:
        fill += [(SKIP, None), (SKIP, None)]
        fill += [(1, f'v_add_f32 v{R+i}, v{R+i}, v{accK+i}') for i in range(8)]
        fill += [(1, f'v_add_f32 v{R+8+i}, v{R+8+i}, v{R+12+i}') for i in range(4)]
        fill += [(1, f'v_cvt_pk_bf16_f32 v{R+12+i//2}, v{R+i}, v{R+i+1}') for i in range(0, 8, 2)]
        fill += [(SKIP, None)]
    t0 = [None]
    cnt = [0]
    def pub():
        if not tailw:
            for i in range(0, 8, 2):
                e(f'v_pk_add_f32 {vr(R+i,2)}, {vr(R+i,2)}, {vr(accK+i,2)}')
            e(f'v_pk_add_f32 {vr(R+8,2)}, {vr(R+8,2)}, {vr(R+12,2)}')
            e(f'v_pk_add_f32 {vr(R+10,2)}, {vr(R+10,2)}, {vr(R+14,2)}')
            for i in range(0, 8, 2):
                e(f'v_cvt_pk_bf16_f32 v{R+12+i//2}, v{R+i}, v{R+i+1}')
        jit(2)
        pz_store(R + 12, R + 8, 'pst')
        lf = e.label('L_nf')
        e(f's_cmp_lg_u32 s3, 0\n s_cbranch_scc1 {lf}')
        e(f'buffer_store_dwordx4 {vr(vN,4)}, v{vL16}, {WS}, {s_F} offen sc1', count=False)
        e.place(lf)
        e('s_mov_b64 exec, -1')
        stamp()
        t0[0] = cnt[0]
    fill.append((1, pub))
    def q_reads(ks):
        buf = Wf + (ks % 4) * 4
        ops = []
        for hf in range(2):
            r, o = lds(vWA, WQ + ks * 2048 + hf * 512)
            ops.append(f'ds_read_b64_tr_b16 {vr(buf + hf*2, 2)}, v{r} offset:{o}')
        return ops
    def q_mf(n):
        ks, rt = divmod(n, 2)
        buf = Wf + (ks % 4) * 4
        c = '0' if ks == 0 else vr(accQ + rt*16, 16)
        if 'q' in x16:
            t = []
            for h in range(2):
                a = accQ + ((ks % 2) * 4 + rt * 2 + h) * 4
                t.append(f'v_mfma_f32_16x16x32_bf16 {vr(a,4)}, {vr(buf,4)}, {ar(ks*8+(h)*4,4)}, {"0" if ks < 2 else vr(a,4)}')
            return '\n'.join(t)
        return f'v_mfma_f32_32x32x16_bf16 {vr(accQ+rt*16,16)}, {vr(buf,4)}, {ar(ks*8+rt*4,4)}, {c}'
    ZG = GA + 32
    z_load = f'buffer_load_dwordx4 {vr(ZG,4)}, v{vZld}, {WS}, {s_Zg} offen sc1'
    def p_load(q):
        return f'buffer_load_dwordx4 {vr(GA+q*4,4)}, v{vLX}, {WS}, {s_Pg if q < 4 else s_t} offen offset:{(q%4)*1024} sc1'
    def gather_ops():
        ops = [lambda: e(z_load, tag='ga')]
        for q in range(8):
            def f(q=q):
                if q == 4:
                    e(f's_add_u32 {s_t}, {s_Pg}, 4096')
                e(p_load(q), tag='ga')
            ops.append(f)
        return ops
    f1_load = f'buffer_load_dwordx2 {vr(vFl,2)}, v{vFa}, {WS}, 0 offen sc1'
    f2_load = f'buffer_load_dwordx2 {vr(vFl,2)}, v{vF2a}, {WS}, 0 offen sc1'
    fcmp = f'v_cmp_ne_u64 vcc, {vr(vN,2)}, {vr(vFl,2)}'
    e(f1_load, tag='fl')
    vw = []
    for gI in range(wo_tail, 7): vw += [(gI, f) for f in wo_dma_ops(gI)]
    gq = gather_ops()
    ne = [0]
    for k_ in range(e1_lead):
        run(fill.pop(0)[1])
        if k_ % e1_step == 0 and wq_late: wq_late.pop(0)()
    assert issued['wq'] == 16
    e.wait_tag('wq', lg=0)
    e('s_barrier')
    QLA = 2
    for ks in range(QLA):
        for op in q_reads(ks): e(op)
    n = 0
    checked = [False]
    mid = [False]
    first = True
    nwo = [0]
    def wo_ok():
        return vw and (vw[0][0] < 5 or mid[0])
    while n < 64:
        if first:
            first = False; e.slots = 0
        elif fill and fill[0][0] == MF:
            e(fill.pop(0)[1])
        else:
            e(q_mf(n))
            ks, rt = divmod(n, 2)
            if ks + QLA < 32:
                e(q_reads(ks + QLA)[rt])
            n += 1
        cnt[0] += 1
        if n == midq and not mid[0]:
            assert t0[0] is not None and midq >= 33
            mid[0] = True
            e('s_barrier')
        if t0[0] is None and we_from <= cnt[0] <= we_to and cnt[0] % wo_gap == 0 and wo_ok():
            vw.pop(0)[1]()
        if t0[0] is not None:
            dt = cnt[0] - t0[0]
            if dt < gdelay:
                if wo_ok() and dt % wo_gap == 0 and dt < gdelay - 3 and nwo[0] < wo_max:
                    vw.pop(0)[1](); nwo[0] += 1
            else:
                if not checked[0]:
                    ne[0] = (28 - len(vw)) // 4
                    spin_slow('f', f1_load, fcmp)
                    checked[0] = True
                if gq:
                    gq.pop(0)()
                elif wo_ok() and dt >= gdelay + gpause and dt % wo_gap == 0 and n <= wo_stop:
                    vw.pop(0)[1]()
        while fill and fill[0][0] != MF:
            if fill[0][0] == SKIP:
                fill.pop(0); break
            if fill[0][0] == 'BUD':
                budget = fill.pop(0)[1]; continue
            if e.slots + fill[0][0] > budget: break
            run(fill.pop(0)[1])
    assert t0[0] is not None and checked[0] and not gq and not fill and mid[0]
    stamp()
    if merge != 2:
        PQ = accK
        n_early = ne[0]
        ph = phi_ops(accQ, 32, PQ)
        nphi = min(len(vw), phi_max)
        left = [nphi]
        step = max(1, (len(ph) // 2 if merge else len(ph)) // (nphi + 1))
        pc = [0]
        def phi_some(k):
            for _ in range(k):
                if ph:
                    run(ph.pop(0)[1]); pc[0] += 1
                    if pc[0] % step == 0 and vw and left[0]:
                        vw.pop(0)[1](); left[0] -= 1
        phi_some(28 if merge else 999)
        stamp()
        TZ = 28
        lab_zs = e.label('L_zslow'); lab_zo = e.label('L_zok')
        zchk = f'''
        v_max3_u32 v{TZ}, v{ZG}, v{ZG+1}, v{ZG+2}
        v_max_u32 v{TZ}, v{TZ}, v{ZG+3}
        v_cmp_eq_u32 vcc, -1, v{TZ}
        '''
        e(zchk)
        e(f's_cbranch_vccnz {lab_zs}')
        e.place(lab_zo)
        def zslow():
            e.place(lab_zs)
            e(f'''
            s_or_b32 {s_mask}, vcc_lo, vcc_hi
            s_lshr_b32 {s_t}, {s_mask}, 16
            s_or_b32 {s_mask}, {s_mask}, {s_t}
            s_lshl_b32 {s_t}, {rh}, 3
            s_lshr_b32 {s_mask}, {s_mask}, {s_t}
            s_add_u32 {s_spin}, {s_spin}, 1
            s_cmp_gt_u32 {s_spin}, {MAXSPIN}
            s_cbranch_scc1 {lab_zo}
            s_add_u32 {s_t}, {s_Pg}, 4096
            s_waitcnt vmcnt(0)
            {z_load}
            ''')
            for q in range(8):
                l = e.label('L_zq')
                e(f's_bitcmp0_b32 {s_mask}, {q}\n s_cbranch_scc1 {l}')
                e(p_load(q))
                e.place(l)
            e('s_waitcnt vmcnt(0)')
            e(zchk)
            e(f's_cbranch_vccnz {lab_zs}\n s_branch {lab_zo}')
        slow.append(zslow)
        D2 = 224; ZP = 212; FA = 216; FB = GA
        zops = []
        for ro in (8, 4, 2, 1):
            for i in range(4):
                zops.append(f'v_add_f32_dpp v{ZG+i}, v{ZG+i}, v{ZG+i} row_ror:{ro} row_mask:0xf bank_mask:0xf')
        zops += [f'v_cvt_pk_bf16_f32 v{TZ}, v{ZG}, v{ZG+1}', f'v_cvt_pk_bf16_f32 v{TZ+1}, v{ZG+2}, v{ZG+3}',
                 f'v_cndmask_b32_e64 v{ZP}, v{TZ}, 0, {s_rhm}', f'v_cndmask_b32_e64 v{ZP+1}, v{TZ+1}, 0, {s_rhm}',
                 f'v_cndmask_b32_e64 v{ZP+2}, 0, v{TZ}, {s_rhm}', f'v_cndmask_b32_e64 v{ZP+3}, 0, v{TZ+1}, {s_rhm}']
        def red_mf(q):
            return f'v_mfma_f32_32x32x16_bf16 {vr(D2,16)}, {vr(SEL,4)}, {vr(GA+q*4,4)}, {"0" if q == 0 else vr(D2,16)}'
        for q in range(8):
            e(red_mf(q))
            if merge:
                for _ in range(3):
                    if zops: e(zops.pop(0))
                while ph and e.slots < 6: phi_some(1)
            elif q >= 4:
                for _ in range(6):
                    if zops: e(zops.pop(0))
        assert not zops
        if merge: phi_some(8)
        lab_gslow = e.label('L_gslow'); lab_gok = e.label('L_gok')
        e(f'v_cmp_u_f32 vcc, v{D2}, v{D2}')
        e(f's_cbranch_vccnz {lab_gslow}')
        e.place(lab_gok)
        def gslow():
            e.place(lab_gslow)
            e(f'''
            s_add_u32 {s_spin}, {s_spin}, 1
            s_cmp_gt_u32 {s_spin}, {MAXSPIN}
            s_cbranch_scc1 {lab_gok}
            s_add_u32 {s_t}, {s_Pg}, 4096
            ''')
            for q in range(8): e(p_load(q))
            e('s_waitcnt vmcnt(0)')
            e(f'v_max_u32 v{TZ}, v{GA}, v{GA+1}')
            for q in range(2, 32, 2):
                e(f'v_max3_u32 v{TZ}, v{TZ}, v{GA+q}, v{GA+q+1}')
            e(f'v_cmp_eq_u32 vcc, -1, v{TZ}\n s_cbranch_vccnz {lab_gslow}')
            for q in range(8): e(red_mf(q))
            e(f's_nop 15\n s_branch {lab_gok}')
        slow.append(gslow)
        stamp()
        for jj in range(4):
            e(f'v_cvt_pk_bf16_f32 v{D2+8+jj}, v{D2+2*jj}, v{D2+2*jj+1}')
        for jj in range(4):
            e(f'v_cndmask_b32_e64 v{FA+jj}, v{D2+8+jj}, v{ZP+jj}, {s_m16}')
        e(f'ds_write_b128 v{vSw}, {vr(FA,4)} offset:{GXSCR}')
        for jj in range(4):
            e(f'v_cndmask_b32_e64 v{FA+4+jj}, v{ZP+jj}, v{D2+8+jj}, {s_m16}')
        e(f'ds_write_b128 v{vSw}, {vr(FA+4,4)} offset:{GXSCR+1024}')
        OD = 64
        def o_mf(rt, hd, fr, first):
            b = OD + (rt*2 + hd) * 16
            e(f'v_mfma_f32_32x32x16_bf16 {vr(b,16)}, {vr(fr+hd*4,4)}, {vr(PQ+(rt*2+hd)*4,4)}, {"0" if first else vr(b,16)}')
        def o_fin(rt, hd):
            b = OD + (rt*2 + hd) * 16
            num = b + (0 if hd == 0 else 8); den = b + (8 if hd == 0 else 0)
            e(f'v_add_f32 v{den}, {s_eps}, v{den}')
            e(f'v_rcp_f32 v{den}, v{den}')
            for i in range(0, 8, 2):
                e(f'v_pk_mul_f32 {vr(num+i,2)}, {vr(num+i,2)}, {vr(den,2)} op_sel_hi:[1,0]')
            for i in range(0, 8, 2):
                e(f'v_cvt_pk_bf16_f32 v{den+4+i//2}, v{num+i}, v{num+i+1}')
            o_store(rt, hd, den + 4)
        def bgx():
            e.wait(lg=0)
            e('s_barrier')
            e(f'ds_read_b128 {vr(FB,4)}, v{vSr} offset:{GXSCR}')
            e(f'ds_read_b128 {vr(FB+4,4)}, v{vSr} offset:{GXSCR+1024}')
        if not merge:
            o_mf(0, 0, FA, True); o_mf(1, 0, FA, True)
            bgx()
            o_mf(0, 1, FA, True); o_mf(1, 1, FA, True)
            o_mf(0, 0, FB, False); o_mf(1, 0, FB, False); o_mf(0, 1, FB, False); o_mf(1, 1, FB, False)
            e(f2_load, tag='f2l')
            o_fin(0, 0); jit(3); o_fin(1, 0); o_fin(0, 1); jit(4); o_fin(1, 1)
        else:
            left[0] = 0
            while len(ph) > 56: phi_some(1)
            o_mf(0, 0, FA, True); phi_some(4); o_mf(0, 1, FA, True); phi_some(4)
            bgx()
            e(f2_load, tag='f2l')
            phi_some(12)
            o_mf(0, 0, FB, False); phi_some(4); o_mf(0, 1, FB, False)
            while len(ph) > 28: phi_some(1)
            phi_some(2)
            o_mf(1, 0, FA, True); phi_some(4); o_mf(1, 0, FB, False)
            phi_some(99)
            o_fin(0, 0)
            o_mf(1, 1, FA, True); o_mf(1, 1, FB, False)
            o_fin(0, 1); o_fin(1, 0); o_fin(1, 1)
        stamp()

    else:
        PQ = accK
        n_early = ne[0]
        TM = 80; TZ = 28
        D2 = 224; ZP = 212; FA = 216; FB = GA
        nphi = min(len(vw), phi_max)
        Mo = lambda b: [f'v_pk_mul_f32 {vr(TM+b*8+i,2)}, {vr(accQ+b*8+i,2)}, {s_l2e}' for i in range(0, 8, 2)]
        def Xo(b):
            r = []
            for i in range(0, 8, 2):
                r += [f'v_exp_f32_e64 v{TM+b*8+i}, v{TM+b*8+i} clamp', f'v_exp_f32_e64 v{TM+b*8+i+1}, v{TM+b*8+i+1} clamp',
                      f'v_max_f32 v{accQ+b*8+i}, {s_eps}, v{accQ+b*8+i}', f'v_max_f32 v{accQ+b*8+i+1}, {s_eps}, v{accQ+b*8+i+1}']
            return r
        Ao = lambda b: [f'v_pk_add_f32 {vr(accQ+b*8+i,2)}, {vr(accQ+b*8+i,2)}, {vr(TM+b*8+i,2)}' for i in range(0, 8, 2)]
        Co = lambda b: [f'v_cvt_pk_bf16_f32 v{PQ+b*4+i//2}, v{accQ+b*8+i}, v{accQ+b*8+i+1}' for i in range(0, 8, 2)]
        lab_zs = e.label('L_zslow'); lab_zo = e.label('L_zok')
        zchk = f"""
        v_max3_u32 v{TZ}, v{ZG}, v{ZG+1}, v{ZG+2}
        v_max_u32 v{TZ}, v{TZ}, v{ZG+3}
        v_cmp_eq_u32 vcc, -1, v{TZ}
        """
        stamp(True)
        e(zchk)
        for b in range(4):
            for op in Mo(b): e(op)
        e(f's_cbranch_vccnz {lab_zs}')
        e.place(lab_zo)
        def zslow():
            e.place(lab_zs)
            e(f"""
            s_or_b32 {s_mask}, vcc_lo, vcc_hi
            s_lshr_b32 {s_t}, {s_mask}, 16
            s_or_b32 {s_mask}, {s_mask}, {s_t}
            s_lshl_b32 {s_t}, {rh}, 3
            s_lshr_b32 {s_mask}, {s_mask}, {s_t}
            s_add_u32 {s_spin}, {s_spin}, 1
            s_cmp_gt_u32 {s_spin}, {MAXSPIN}
            s_cbranch_scc1 {lab_zo}
            s_add_u32 {s_t}, {s_Pg}, 4096
            s_waitcnt vmcnt(0)
            {z_load}
            """)
            for q in range(8):
                l = e.label('L_zq')
                e(f's_bitcmp0_b32 {s_mask}, {q}\n s_cbranch_scc1 {l}')
                e(p_load(q))
                e.place(l)
            e('s_waitcnt vmcnt(0)')
            e(zchk)
            e(f's_cbranch_vccnz {lab_zs}\n s_branch {lab_zo}')
        slow.append(zslow)
        stamp()
        zops = []
        for ro in (8, 4, 2, 1):
            for i in range(4):
                zops.append(f'v_add_f32_dpp v{ZG+i}, v{ZG+i}, v{ZG+i} row_ror:{ro} row_mask:0xf bank_mask:0xf')
        zops += [f'v_cvt_pk_bf16_f32 v{TZ}, v{ZG}, v{ZG+1}', f'v_cvt_pk_bf16_f32 v{TZ+1}, v{ZG+2}, v{ZG+3}',
                 f'v_cndmask_b32_e64 v{ZP}, v{TZ}, 0, {s_rhm}', f'v_cndmask_b32_e64 v{ZP+1}, v{TZ+1}, 0, {s_rhm}',
                 f'v_cndmask_b32_e64 v{ZP+2}, 0, v{TZ}, {s_rhm}', f'v_cndmask_b32_e64 v{ZP+3}, 0, v{TZ+1}, {s_rhm}']
        def red_mf(q):
            return f'v_mfma_f32_32x32x16_bf16 {vr(D2,16)}, {vr(SEL,4)}, {vr(GA+q*4,4)}, {"0" if q == 0 else vr(D2,16)}'
        xq = Xo(0)[:pre_x]
        for op in xq: e(op)
        xq = zops + Xo(0)[pre_x:] + Xo(1)
        def fillq(q, bud):
            while q and e.slots < bud: e(q.pop(0))
        left = nphi
        stamp(True)
        e.wait_tag('ga')
        stamp(True)
        for q in range(8):
            e(red_mf(q))
            if left and q % 2 == 1:
                vw.pop(0)[1](); left -= 1
            fillq(xq, 6)
        stamp(True)
        for _ in range(8):
            if xq: e(xq.pop(0))
        lab_gslow = e.label('L_gslow'); lab_gok = e.label('L_gok')
        cv4 = [f'v_cvt_pk_bf16_f32 v{D2+8+jj}, v{D2+2*jj}, v{D2+2*jj+1}' for jj in range(4)]
        e(f'v_cmp_u_f32 vcc, v{D2}, v{D2}')
        for op in cv4: e(op)
        e(f's_cbranch_vccnz {lab_gslow}')
        e.place(lab_gok)
        def gslow():
            e.place(lab_gslow)
            e(f"""
            s_add_u32 {s_spin}, {s_spin}, 1
            s_cmp_gt_u32 {s_spin}, {MAXSPIN}
            s_cbranch_scc1 {lab_gok}
            s_add_u32 {s_t}, {s_Pg}, 4096
            """)
            for q in range(8): e(p_load(q))
            e('s_waitcnt vmcnt(0)')
            e(f'v_max_u32 v{TZ}, v{GA}, v{GA+1}')
            for q in range(2, 32, 2):
                e(f'v_max3_u32 v{TZ}, v{TZ}, v{GA+q}, v{GA+q+1}')
            e(f'v_cmp_eq_u32 vcc, -1, v{TZ}\n s_cbranch_vccnz {lab_gslow}')
            for q in range(8): e(red_mf(q))
            for op in cv4: e(op)
            e(f's_branch {lab_gok}')
        slow.append(gslow)
        assert not any('dpp' in x or 'cndmask' in x for x in xq)
        stamp(True)
        for jj in range(4):
            e(f'v_cndmask_b32_e64 v{FA+jj}, v{D2+8+jj}, v{ZP+jj}, {s_m16}')
        e(f'ds_write_b128 v{vSw}, {vr(FA,4)} offset:{GXSCR}')
        for jj in range(4):
            e(f'v_cndmask_b32_e64 v{FA+4+jj}, v{ZP+jj}, v{D2+8+jj}, {s_m16}')
        e(f'ds_write_b128 v{vSw}, {vr(FA+4,4)} offset:{GXSCR+1024}')
        while xq: e(xq.pop(0))
        for op in Ao(0): e(op)
        stamp(True)
        e.wait(lg=0)
        e('s_barrier')
        stamp(True)
        e(f'ds_read_b128 {vr(FB,4)}, v{vSr} offset:{GXSCR}')
        e(f'ds_read_b128 {vr(FB+4,4)}, v{vSr} offset:{GXSCR+1024}')
        stamp()
        for _ in range(wo_afterbgx):
            if vw: vw.pop(0)[1]()
        e(f2_load, tag='f2l')
        for op in Ao(1) + Co(0) + Co(1): e(op)
        ODs = {(0, 0): 64, (0, 1): 224, (1, 0): 184, (1, 1): 112}
        def o_mf(rt, hd, fr, first):
            b = ODs[(rt, hd)]
            e(f'v_mfma_f32_32x32x16_bf16 {vr(b,16)}, {vr(fr+hd*4,4)}, {vr(PQ+(rt*2+hd)*4,4)}, {"0" if first else vr(b,16)}')
        def fin_ops(rt, hd, pk):
            b = ODs[(rt, hd)]
            num = b + (0 if hd == 0 else 8); den = b + (8 if hd == 0 else 0)
            r = [f'v_add_f32 v{den}, {s_eps}, v{den}', f'v_rcp_f32 v{den}, v{den}']
            if pk: r += [f'v_pk_mul_f32 {vr(num+i,2)}, {vr(num+i,2)}, {vr(den,2)} op_sel_hi:[1,0]' for i in range(0, 8, 2)]
            else: r += [f'v_mul_f32 v{num+i}, v{num+i}, v{den}' for i in range(8)]
            r += [f'v_cvt_pk_bf16_f32 v{den+4+i//2}, v{num+i}, v{num+i+1}' for i in range(0, 8, 2)]
            r.append(lambda: o_store(rt, hd, den + 4))
            return r
        stamp(True)
        xq = Xo(2) + Xo(3)
        for (hd, fr, first) in ((0, FA, True), (1, FA, True), (0, FB, False), (1, FB, False)):
            o_mf(0, hd, fr, first); fillq(xq, 6)
        while xq: e(xq.pop(0))
        stamp(True)
        for op in Ao(2) + Ao(3) + Co(2) + Co(3): e(op)
        stamp(True)
        f0 = fin_ops(0, 0, False); f1 = fin_ops(0, 1, False)
        fq = f0[:2] + f1[:2] + f0[2:] + f1[2:]
        for (hd, fr, first) in ((0, FA, True), (0, FB, False), (1, FA, True), (1, FB, False)):
            o_mf(1, hd, fr, first)
            while fq and e.slots < 6: run(fq.pop(0))
        while fq: run(fq.pop(0))
        stamp(True)
        jit(3)
        f0 = fin_ops(1, 0, True); f1 = fin_ops(1, 1, True)
        for x in f0[:2] + f1[:2] + f0[2:] + f1[2:]: run(x)
        stamp()
        stamp(True)
    def wo_read_ops(g):
        ops = []
        for t in range(4):
            i = g * 4 + t
            for gm in range(2):
                for hf in range(2):
                    r, o = lds(vOA + gm*3, WOG[g] + hf*4096 + t*1024)
                    ops.append(f'ds_read_b64_tr_b16 {ar((i*2+gm)*4 + hf*2, 2)}, v{r} offset:{o}')
        return ops
    rdq = []
    for gI in range(n_early): rdq += wo_read_ops(gI)
    n_mid = (28 - len(vw)) // 4
    late = [f for _, f in vw] + wo_dma_ops(7)
    nlate = len(late)
    for f in late: f()
    spin_slow('h', f2_load, fcmp)
    if n_mid > n_early:
        e('s_barrier')
        for gI in range(n_early, n_mid): rdq += wo_read_ops(gI)
    ACC = 192
    zq = [f'v_pk_mov_b32 {vr(ACC+i,2)}, 0, 0' for i in range(0, 32, 2)] + [f'v_and_b32 v{vGo2}, 0x1f0, v{vL16}', f'v_lshlrev_b32 v{vGo2}, 2, v{vGo2}', f's_mov_b32 {s_mask}, 0', f'v_xor_b32 v46, 8192, v{vFw}']
    nrd = 0
    while rdq and nrd < rd_pre:
        e(rdq.pop(0)); nrd += 1
    if ost_wait: e.wait_tag('ost')
    stamp()
    def OF(i): return 48 + i*4 if i < 20 else 144 + (i - 20) * 4
    NG = 32 // gs
    def o_load(i):
        if i % 4 == 0:
            e(f's_add_u32 {s_t}, {s_ro}, {(i//4)*4096}\n s_and_b32 {s_t}, {s_t}, 0x7fff\n s_add_u32 {s_t}, {s_t}, {s_Og}')
        e(f'buffer_load_dwordx4 {vr(OF(i),4)}, v{vLX}, {WS}, {s_t} offen offset:{(i%4)*1024} sc1', tag=f'o{i}')
    def o_reload(g):
        i = g * gs
        e(f's_add_u32 {s_t}, {s_ro}, {(i//4)*4096}\n s_and_b32 {s_t}, {s_t}, 0x7fff\n s_add_u32 {s_t}, {s_t}, {s_Og}')
        for k in range(i, i + gs):
            e(f'buffer_load_dwordx4 {vr(OF(k),4)}, v{vLX}, {WS}, {s_t} offen offset:{(k%4)*1024} sc1')
    g_load = f'buffer_load_dword v{vGv}, v{vGo2}, {WS}, {s_Gg} offen sc1'
    NA = oahead * 4
    for i in range(NA): o_load(i)
    while zq: e(zq.pop(0))
    while rdq: e(rdq.pop(0))
    e.wait_tag('wo7')
    e('s_barrier')
    for gI in range(n_mid, 8): rdq += wo_read_ops(gI)
    while rdq: e(rdq.pop(0))
    e.wait(lg=0)
    def check_ops(g):
        b = OF(g*gs); nr = gs * 4
        ops = [f'v_max3_u32 v{T}, v{b}, v{b+1}, v{b+2}']
        for q in range(3, nr - 1, 2):
            ops.append(f'v_max3_u32 v{T}, v{T}, v{b+q}, v{b+q+1}')
        ops.append(f'v_max_u32 v{T}, v{T}, v{b+nr-1}')
        ops.append(f'v_cmp_eq_u32 vcc, -1, v{T}')
        return ops
    def grp_mfs(g, last=False):
        r = []
        order = [(i, gm) for i in range(gs) for gm in (1, 0)]
        if last: order = [(i, 1) for i in range(gs)] + [(i, 0) for i in range(gs)]
        for i, gm in order:
            hi = g*gs + i
            r.append(f'v_mfma_f32_32x32x16_bf16 {vr(ACC+gm*16,16)}, {ar((hi*2+gm)*4,4)}, {vr(OF(hi),4)}, {vr(ACC+gm*16,16)}')
        return r
    gfin = [f'v_sub_f32 v44, 1.0, v{vGv}', f'v_cndmask_b32_e64 v44, v{vGv}, v44, {s_rhm}', 'v_mov_b32 v45, v44']
    fwr = [f'ds_write_b128 v{vFw}, {vr(ACC+16+q*4,4)} offset:{FSCR+q*1024}' for q in range(4)]
    for op in check_ops(0): e(op)
    for g in range(NG):
        lskip = e.label('L_osk'); lnext = e.label('L_onx')
        e(f's_cbranch_vccnz {lskip}')
        snap = e.snapshot()
        def side(g=g):
            lq = [lambda i=i: o_load(i) for i in range(g*gs + NA, min(32, (g+1)*gs + NA))]
            if g*gs + NA == 28: lq = [lambda: (e(g_load, tag='g'), o_load(28))] + lq[1:]
            ck = check_ops(g + 1) if g + 1 < NG else list(gfin)
            return lq, ck
        lq, ck = side()
        nm = 2 * gs
        for m, mf in enumerate(grp_mfs(g, g == NG - 1)):
            e(mf)
            if lq and (m < gs): lq.pop(0)()
            if g == NG - 1:
                while ck: e(ck.pop(0))
                if early_fin:
                    if gs == 4 and m >= 6:
                        for q in range(2*(m-6), 2*(m-6)+2): e(fwr[q])
                    elif gs < 4 and m == nm - 1:
                        for q in range(4): e(fwr[q])
            elif gs == 4:
                if m >= 5:
                    for _ in range(3):
                        if ck: e(ck.pop(0))
            elif m == nm - 2:
                while ck: e(ck.pop(0))
        assert not lq and not ck
        e.place(lnext)
        def oskip(g=g, lskip=lskip, lnext=lnext, snap=snap, side=side):
            e.restore(snap); e.hist = []
            e.place(lskip)
            e(f's_bitset1_b32 {s_mask}, {g}')
            lq, ck = side()
            for f in lq: f()
            for op in ck: e(op)
            e(f's_branch {lnext}')
        slow.append(oskip)
    lfix = e.label('L_ofix'); ldone = e.label('L_odone')
    e(f's_cmp_lg_u32 {s_mask}, 0\n s_cbranch_scc1 {lfix}')
    e.place(ldone)
    def ofix():
        e.place(lfix)
        e(f"""
        s_add_u32 {s_spin}, {s_spin}, 0x100
        s_cmp_gt_u32 {s_spin}, {MAXSPIN*256}
        s_cbranch_scc1 {ldone}
        """)
        for g in range(NG):
            l = e.label('L_fl')
            e(f's_bitcmp0_b32 {s_mask}, {g}\n s_cbranch_scc1 {l}')
            o_reload(g)
            e.place(l)
        e('s_waitcnt vmcnt(0)')
        for g in range(NG):
            l = e.label('L_fm')
            e(f's_bitcmp0_b32 {s_mask}, {g}\n s_cbranch_scc1 {l}')
            for op in check_ops(g): e(op)
            e(f's_cbranch_vccnz {l}')
            e(f's_bitset0_b32 {s_mask}, {g}')
            for mf in grp_mfs(g): e(mf)
            e.place(l)
        e(f's_cmp_lg_u32 {s_mask}, 0\n s_cbranch_scc1 {lfix}\n s_nop 15')
        if early_fin:
            for q in range(4): e(fwr[q])
        e(f's_branch {ldone}')
    slow.append(ofix)
    stamp()
    if not early_fin:
        for q in range(4):
            e(f'ds_write_b128 v{vFw}, {vr(ACC+16+q*4,4)} offset:{FSCR+q*1024}')
    e('s_waitcnt lgkmcnt(0)')
    e('s_barrier')
    OT = 48
    for q in range(4):
        e(f'ds_read_b128 {vr(OT+q*4,4)}, v46 offset:{FSCR+q*1024}')
    for p in range(2):
        for i in range(p*8, p*8+8, 2):
            e(f'v_pk_add_f32 {vr(ACC+i,2)}, {vr(ACC+i,2)}, {vr(OT+i,2)} neg_lo:[0,1] neg_hi:[0,1]')
            e(f'v_pk_fma_f32 {vr(ACC+i,2)}, {vr(ACC+i,2)}, v[44:45], {vr(OT+i,2)}')
            e(f'v_cvt_pk_bf16_f32 v{T+i//2}, v{ACC+i}, v{ACC+i+1}')
        e(f'v_permlane32_swap_b32 v{T+p*4}, v{T+p*4+2}')
        e(f'v_permlane32_swap_b32 v{T+p*4+1}, v{T+p*4+3}')
        if x_full:
            if p == 0:
                e(f'v_lshrrev_b32 v47, 7, v{vL16}\n v_lshlrev_b32 v47, 10, v47\n v_and_b32 v30, 127, v{vL16}\n v_add_u32 v47, v47, v30\n s_lshl_b32 {s_t}, {rh}, 6\n s_sub_u32 {s_out}, {s_out}, {s_t}\n s_lshl_b32 {s_t}, {rh}, 14\n s_add_u32 {s_out}, {s_out}, {s_t}')
            else:
                e(f's_add_u32 {s_out}, {s_out}, 8192')
            e(f'buffer_store_dwordx4 {vr(T+p*4,4)}, v47, {OUT}, {s_out} offen {out_mod}')
        else:
            e(f'buffer_store_dwordx4 {vr(T+p*4,4)}, v{vOut}, {OUT}, {s_out} offen offset:{32*p} {out_mod}')
    stamp()
    if amp >= 0:
        e('s_waitcnt vmcnt(0)')
        stamp()
        e(f'''
        s_memrealtime s[60:61]
        s_waitcnt lgkmcnt(0)
        s_sub_u32 s57, s{70+2*amp}, s70
        s_mul_i32 s57, s57, 10
        s_min_u32 s57, s57, 100000
        s_add_u32 s57, s57, s60
        L_amp:
        s_memrealtime s[60:61]
        s_waitcnt lgkmcnt(0)
        s_sub_u32 s58, s60, s57
        s_cmp_lt_i32 s58, 0
        s_cbranch_scc1 L_amp
        ''')
    elif stamps:
        e('s_waitcnt vmcnt(0)')
        stamp()
        e(f'''
        s_waitcnt lgkmcnt(0)
        s_cmp_lg_u32 s3, {stamps-1}
        s_cbranch_scc1 L_end
        s_add_u32 s4, s4, {STAMP_OFF}
        s_addc_u32 s5, s5, 0
        s_lshl_b32 s57, s2, 7
        v_mov_b32 v10, s57
        ''')
        for s in range(16):
            if s >= nst[0]:
                e(f'v_mov_b32 v12, {s_spin}\n v_mov_b32 v13, 0')
            else:
                e(f'v_mov_b32 v12, s{70+2*s}\n v_mov_b32 v13, s{71+2*s}')
            e(f'global_store_dwordx2 v10, v[12:13], s[4:5] offset:{8*s}')
            e('s_nop 1')
    e('L_end:')
    e('s_endpgm')
    for s in slow:
        e.hist = []; e.vm = []; e.lg = []
        s()
    e.raw('.p2align 8\n.fill 4608, 4, 0xbf810000')
    print('instr counts', e.count, 'nops', e.nops, 'stamps', nst[0], 't0 at', t0[0], 'early', n_early, 'mid', n_mid, 'phi', nphi, 'late', nlate, file=sys.stderr)
    txt = e.text()
    if al:
        from align import align
        txt, nc, nn = align(txt, al)
        print('aligned: conv', nc, 'nops', nn, file=sys.stderr)
    return kernel_file(txt, 256, 256, 163840, vgpr=512, accum=256, pad=pad)

def multi(prefix, variants, base, g=None):
    names = []
    for nm, kw in variants:
        fn = f'mb/{prefix}_{nm}.s'
        d = dict(base); d.update(kw)
        open('code/' + fn, 'w').write((g or gen)(**d))
        names.append(fn)
    print(' '.join(names)); print(str(names).replace("'", '"'))

if __name__ == '__main__':
    open('cdna_kernels/' + NAME + '.s', 'w').write(gen())
    multi('k10', [('a', {}), ('pf1', dict(pf3=1)), ('pf2', dict(pf3=2))], dict(stamps=1))
```

```python
import sys
from asmlib import *
from emit import Emit

O_OFF = 0
P_OFF = 0x400000
Z_OFF = 0x480000
G_OFF = 0x4a0000
F_OFF = 0x4c0000
F1_OFF = 0x4c8000
SPILL = 0x500000 + 128
WS_BYTES = 0xa00000
STAMP_OFF = 0x8000000
S0, S1, S2 = 0, 32768, 65536
WQ = 98304
CSLOT = [S0, S1, S2, WQ, WQ + 32768, S0, S1, S2]
GWL = WQ + 65536 - 1024
KVSCR = S0
ZSCR = S0 + 8192
GXSCR = S0
FSCR = S0
WOG = [S0 + 16384, S1, S1 + 16384, S2, S2 + 16384, WQ, WQ + 16384, WQ + 32768]
LOG2E = 0x3fb8aa3b
EPS = 0x358637bd
MF, SKIP = 'MF', 'SKIP'

def vr(b, n=1):
    return f'v{b}' if n == 1 else f'v[{b}:{b+n-1}]'
def ar(b, n=1):
    return f'a{b}' if n == 1 else f'a[{b}:{b+n-1}]'
def lines(t):
    return [l.strip() for l in t.split('\n') if l.strip()]

def gen(stamps=0, MAXSPIN=1 << 16, cyc=False, amp=-1, budget=30, gdelay=32, wo_gap=2, gpause=14, wo_max=99,
        oahead=3, ramp_ks=8, look=3, e1_lead=64, midq=34, phi_max=99, out_mod='', rd_pre=999, ost_wait=True, wo_tail=1,
        merge=False, x_nowo=False, per_dma=12, flag_bar=5, nweave=0, x16='', wq_e1=0, e1_step=8, poison_first=False, kv_pace=2, early_fin=True, ws_base=0, tlb=0, rot=12, lag3=0, skip3=False, jitter=0, al=0, x_nopoi=False, tailw=0, gs=4, g0_pos=4, we_from=99, we_to=0, tail_from=28, pre_x=0, pad=4096-0x300, wtouch=0, iwarm=False, x_full=False, pf3=0, zoom=False, wo_stop=64, wo_afterbgx=0, nonce_bar=2):
    e = Emit()
    nst = [0]
    issued = e.issued
    def stamp(z=False):
        if stamps and nst[0] < 13 and (z == zoom or nst[0] == 0):
            i = nst[0]; nst[0] += 1
            e(f'{"s_memtime" if cyc else "s_memrealtime"} s[{70+2*i}:{71+2*i}]')
    def jit(k):
        if not jitter: return
        lab = e.label('L_jit'); l2 = e.label('L_jite')
        e(f'''
        s_memtime s[92:93]
        s_waitcnt lgkmcnt(0)
        s_mul_i32 s94, s2, {37 + 2*k}
        s_add_u32 s94, s94, s92
        s_lshr_b32 s94, s94, 3
        s_and_b32 s94, s94, {jitter}
        s_cmp_lt_u32 s94, {jitter*3//4}
        s_cbranch_scc1 {l2}
        {lab}:
        s_sleep 8
        s_sub_u32 s94, s94, 1
        s_cmp_gt_u32 s94, {jitter*3//4}
        s_cbranch_scc1 {lab}
        {l2}:
        ''')
    def run(x):
        e(x) if isinstance(x, str) else x()
    X, W, WO, WS, OUT, DBG, GW = 's[8:11]', 's[12:15]', 's[16:19]', 's[20:23]', 's[24:27]', 's[28:31]', 's[32:35]'
    s_r, s_c, s_R64, s_C64 = 's36', 's37', 's38', 's39'
    s_xbase, s_wbase, s_F = 's40', 's41', 's42'
    s_xs, s_ws_ = 's43', 's44'
    s_w4k, s_w2k, s_out = 's45', 's46', 's47'
    s_m16, s_l2e, s_eps = 's[48:49]', 's[50:51]', 's52'
    s_P, s_Z, s_O, s_G = 's53', 's54', 's55', 's56'
    s_t, s_t2, s_spin, s_wos, s_O2 = 's57', 's58', 's59', 's60', 's61'
    s_Pg, s_Zg, s_Og, s_Gg = 's62', 's63', 's64', 's65'
    ch, rh = 's66', 's67'
    s_hm, s_rhm = 's[6:7]', 's[96:97]'
    s_rq, s_mask, s_rw, s_ro = 's98', 's99', 's100', 's101'
    vF2a = 0; vZld = 2; vGo = 3; vN = 4
    vX = 8; vW = 12; vL16 = 16; vFa = 17
    vXA = 18; vWA = 30; vGA = 33; vGacc = 36; vGt = 37; vZero = 39; vGW = 40
    accK = 48; accV = 80; Wf = 112
    vO = 128; vOA = 132; vOut = 138; vFw = 139; vSw = 140; vSr = 141; vZw = 142; vZr = 143
    accQ = 144; GA = 176
    PK = 176; VF = 192; D = 208; DZ = 224; ONES = 240
    T = 244; SEL = 252
    vFl = 40; vGv = 42; vGo2 = 43
    vLX = 1 if skip3 else 16
    A0, A1, A2, A3, B0, B1, B2, vGWa = 192, 193, 194, 195, 196, 197, 198, 199

    if rot == 7:
        rotcode = f's_lshr_b32 {s_rq}, s2, 1\n s_add_u32 {s_rq}, {s_rq}, {s_r}\n s_and_b32 {s_rq}, {s_rq}, 3\n s_lshl_b32 {s_rq}, {s_rq}, 1'
    elif rot == 8:
        rotcode = f's_and_b32 {s_rq}, s2, 6\n s_add_u32 {s_rq}, {s_rq}, {s_r}\n s_and_b32 {s_rq}, {s_rq}, 7'
    elif rot == 12:
        rotcode = f's_lshl_b32 {s_rq}, {s_r}, 1\n s_add_u32 {s_rq}, {s_rq}, s2\n s_and_b32 {s_rq}, {s_rq}, 7'
    elif rot == 13:
        rotcode = f's_lshl_b32 {s_rq}, {s_r}, 1\n s_add_u32 {s_rq}, {s_rq}, s2\n s_lshr_b32 s59, s2, 4\n s_and_b32 s59, s59, 4\n s_add_u32 {s_rq}, {s_rq}, s59\n s_and_b32 {s_rq}, {s_rq}, 7'
    elif rot == 14:
        rotcode = f's_lshl_b32 {s_rq}, {s_r}, 1\n s_add_u32 {s_rq}, {s_rq}, s2\n s_lshr_b32 s59, s2, 5\n s_and_b32 s59, s59, 6\n s_add_u32 {s_rq}, {s_rq}, s59\n s_and_b32 {s_rq}, {s_rq}, 7'
    elif rot == 15:
        rotcode = f's_lshl_b32 {s_rq}, {s_r}, 2\n s_add_u32 {s_rq}, {s_rq}, s2\n s_and_b32 {s_rq}, {s_rq}, 7'
    elif rot == 16:
        rotcode = f's_lshr_b32 s59, s2, 5\n s_and_b32 s59, s59, 6\n s_lshr_b32 {s_rq}, s2, 1\n s_and_b32 {s_rq}, {s_rq}, 1\n s_add_u32 {s_rq}, {s_rq}, s59\n s_lshl_b32 s59, s2, 2\n s_add_u32 {s_rq}, {s_rq}, s59\n s_and_b32 {s_rq}, {s_rq}, 7'
    if lag3:
        rotcode += f'\n s_and_b32 s59, s2, 0xc2\n s_cmp_eq_u32 s59, 0xc0\n s_cselect_b32 s59, {lag3}, 0\n s_sub_u32 {s_rq}, {s_rq}, s59\n s_and_b32 {s_rq}, {s_rq}, 7'
    stamp()
    e(f'''
    s_load_dwordx4 s[4:7], s[0:1], 0
    s_load_dwordx4 s[64:67], s[0:1], 32
    s_load_dwordx4 s[32:35], s[0:1], 48
    s_load_dwordx2 s[16:17], s[0:1], 16
    s_load_dwordx4 s[28:31], s[0:1], 64
    s_memrealtime s[68:69]
    s_cmp_ge_u32 s2, 256
    s_cbranch_scc1 L_end
    v_lshrrev_b32 v{A0}, 6, v0
    s_getpc_b64 s[60:61]
    v_readfirstlane_b32 s3, v{A0}
    s_lshr_b32 s58, s2, 3
    s_lshl_b32 s57, s58, 9
    v_lshl_add_u32 v{B0}, v{A0}, 7, s57
    v_and_b32 v{B2}, 1, v0
    v_lshl_add_u32 v{B0}, v{B2}, 14, v{B0}
    ''')
    e(f'global_load_dword v{B1}, v{B0}, s[60:61]', tag='kv0')
    e(f'''
    v_and_b32 v1, 63, v0
    s_and_b32 s36, s2, 1
    s_lshl_b32 s36, s36, 3
    s_and_b32 s37, s58, 7
    s_add_u32 s36, s36, s37
    v_lshrrev_b32 v{A0}, 3, v1
    v_lshrrev_b32 v{A1}, 4, v1
    v_and_b32 v{A2}, 7, v1
    v_xor_b32 v{A3}, v{A2}, v{A1}
    v_lshlrev_b32 v{A3}, 4, v{A3}
    v_lshl_add_u32 v{vX}, v{A0}, 10, v{A3}
    v_xor_b32 v{B2}, 64, v{vX}
    v_add_u32 v{vX+1}, {8192-1024}, v{B2}
    v_add_u32 v{vX+2}, {2*(8192-1024)}, v{vX}
    v_add_u32 v{vX+3}, {3*(8192-1024)}, v{B2}
    s_lshl_b32 {s_w4k}, s3, 12
    s_lshl_b32 {s_xbase}, {s_r}, 17
    s_lshl_b32 {s_t}, s3, 15
    s_add_u32 {s_xbase}, {s_xbase}, {s_t}
    s_mov_b32 m0, {s_w4k}
    {rotcode}
    s_lshl_b32 s59, {s_rq}, 7
    s_add_u32 {s_xs}, s59, {s_xbase}
    s_mov_b32 s10, 0x200000
    s_mov_b32 s11, 0x20000
    ''')
    e('s_waitcnt lgkmcnt(0)')
    stamp()
    jit(0)
    e('s_mov_b32 s8, s4\n s_mov_b32 s9, s5')
    if wtouch:
        e(f's_bitcmp1_b32 s2, 2\n s_cselect_b32 s12, s64, s6\n s_cselect_b32 s13, s65, s7\n v_mov_b32 v{vZero}, 0')
        e(f'global_load_dword v201, v{vZero}, s[12:13]', tag='tch')
        if wtouch > 1:
            e(f'global_load_dword v202, v{vZero}, s[32:33]', tag='tch')
            e(f'global_load_dword v203, v{vZero}, s[30:31]', tag='tch')
    def adv():
        e(f's_add_u32 {s_rq}, {s_rq}, 1\n s_and_b32 {s_rq}, {s_rq}, 7')
    def x_dma_ops(j):
        sl = CSLOT[j]
        def mk(i):
            def f():
                if j > 0 and i == 0:
                    e(f's_add_u32 m0, {s_w4k}, {sl}\n s_lshl_b32 {s_xs}, {s_rq}, 7\n s_add_u32 {s_xs}, {s_xs}, {s_xbase}')
                e(f'buffer_load_dwordx4 v{vX+i}, {X}, {s_xs} offen offset:{1024*i} lds', tag=f'kv{j}')
                if i == 2 and j > 0:
                    e(f's_mul_i32 {s_ws_}, {s_rq}, {64*3072}\n s_add_u32 {s_ws_}, {s_ws_}, {s_wbase}')
                if i == 3:
                    e(f's_add_u32 m0, {s_w4k}, {sl+16384}')
            return f
        return [mk(i) for i in range(4)]
    def w_dma_ops(j):
        def mk(i):
            def f():
                e(f'buffer_load_dwordx4 v{vW+i}, {W}, {s_ws_} offen offset:{1024*i} lds', tag=f'kv{j}')
                if i == 1: adv()
            return f
        return [mk(i) for i in range(4)]
    def wq_dma_ops(j):
        def f0():
            e(f's_add_u32 m0, {s_w2k}, {j*8192}\n s_mul_i32 {s_ws_}, {s_rq}, {64*3072}\n s_add_u32 {s_ws_}, {s_ws_}, {s_wbase}')
            e(f'buffer_load_dwordx4 v{vW+2}, {W}, {s_ws_} offen lds', tag='wq')
        def f1():
            e(f'buffer_load_dwordx4 v{vW+3}, {W}, {s_ws_} offen offset:1024 lds', tag='wq')
            if j < 7: adv()
        return [f0, f1]
    def wo_dma_ops(g):
        def mk(t):
            def f():
                if t == 0:
                    e(f's_add_u32 m0, {s_w4k}, {WOG[g]}\n s_add_u32 {s_t2}, {s_wos}, {s_rw}')
                if not x_nowo: e(f'buffer_load_dwordx4 v{vO+t}, {WO}, {s_t2} offen offset:{1024*t} lds', tag=f'wo{g}')
                if t == 3 and g < 7:
                    e(f's_add_u32 {s_rw}, {s_rw}, 65536\n s_and_b32 {s_rw}, {s_rw}, 0x7ffff')
            return f
        return [mk(t) for t in range(4)]
    wset = lines(f'''
    s_and_b32 s37, s2, 6
    s_lshl_b32 s37, s37, 1
    s_lshr_b32 s38, s58, 3
    s_add_u32 s37, s37, s38
    v_and_b32 v{A3}, 1, v{A1}
    v_lshlrev_b32 v{A3}, 2, v{A3}
    v_xor_b32 v{A3}, v{A3}, v{A2}
    v_lshlrev_b32 v{A3}, 4, v{A3}
    v_mul_u32_u24 v{B2}, 3072, v{A0}
    v_add_u32 v{vW+2}, v{B2}, v{A3}
    v_add_u32 v{vW+0}, 1024, v{vW+2}
    v_add_u32 v{vW+1}, 24576, v{vW+2}
    v_add_u32 v{vW+3}, 23552, v{vW+2}
    s_and_b32 {s_wbase}, {s_c}, 7
    s_lshl_b32 {s_wbase}, {s_wbase}, 7
    s_mul_i32 {s_t}, s3, {16*3072}
    s_add_u32 {s_wbase}, {s_wbase}, {s_t}
    s_mov_b32 s14, 0x180000
    s_mov_b32 s15, 0x20000
    s_mul_i32 {s_ws_}, {s_rq}, {64*3072}
    s_add_u32 {s_ws_}, {s_ws_}, {s_wbase}
    ''')
    pre = lines(f"""
    s_and_b32 {ch}, s3, 1
    s_lshr_b32 {rh}, s3, 1
    """)
    pre += lines(f'''
    v_lshrrev_b32 v{A1}, 5, v1
    v_and_b32 v{A0}, 31, v1
    s_lshl_b32 {s_t}, {rh}, 13
    v_lshl_add_u32 v{A2}, v{A0}, 7, {s_t}
    v_bfe_u32 v{A3}, v1, 1, 3
    v_xor_b32 v{A3}, v{A3}, v{A1}
    ''')
    for t in range(4):
        pre += [f'v_xor_b32 v{B2}, {2*t}, v{A3}', f'v_lshl_add_u32 v{vXA+3*t}, v{B2}, 4, v{A2}']
    pre += lines(f'''
    v_bfe_u32 v{A3}, v1, 2, 2
    v_lshlrev_b32 v{A2}, 7, v{A3}
    v_bfe_u32 v{A3}, v1, 4, 1
    v_lshl_add_u32 v{A2}, v{A3}, 5, v{A2}
    v_and_b32 v{A3}, 3, v1
    v_lshl_add_u32 v{A2}, v{A3}, 3, v{A2}
    v_bfe_u32 v{A3}, v1, 3, 1
    v_xor_b32 v{B2}, {ch}, v{A3}
    v_lshl_add_u32 v{B2}, v{B2}, 6, v{A2}
    v_lshl_add_u32 v{vWA}, v{A1}, 10, v{B2}
    v_xor_b32 v{B2}, {rh}, v{A3}
    v_lshl_add_u32 v{B2}, v{B2}, 6, v{A2}
    v_lshl_add_u32 v{B2}, v{A1}, 9, v{B2}
    v_add_u32 v{vOA}, {s_t}, v{B2}
    s_lshl_b32 {s_t}, {s_c}, 3
    s_lshl_b32 {s_t2}, s3, 1
    s_add_u32 {s_t}, {s_t}, {s_t2}
    v_add_u32 v{A2}, {s_t}, v{A1}
    v_bfe_u32 v{A3}, v{A2}, 1, 3
    v_bfe_u32 v{B2}, v1, 2, 3
    v_xor_b32 v{A3}, v{A3}, v{B2}
    v_lshlrev_b32 v{A3}, 4, v{A3}
    v_lshl_add_u32 v{A3}, v{A2}, 7, v{A3}
    v_and_b32 v{B2}, 3, v1
    v_lshl_add_u32 v{vGA}, v{B2}, 2, v{A3}
    v_lshlrev_b32 v{vGWa}, 2, v{A0}
    v_add_u32 v{vGWa}, {GWL}, v{vGWa}
    v_mov_b32 v{vGacc}, 0
    ''')
    U0, U1, U2 = A2, A3, B2
    setup = []
    for t in range(4):
        setup += [f'v_add_u32 v{vXA+3*t+1}, 65536, v{vXA+3*t}', f'v_add_u32 v{vXA+3*t+2}, 131072, v{vXA+3*t}']
    setup += lines(f'''
    v_add_u32 v{vWA+1}, 65536, v{vWA}
    v_add_u32 v{vWA+2}, 131072, v{vWA}
    v_add_u32 v{vGA+1}, 65536, v{vGA}
    v_add_u32 v{vGA+2}, 131072, v{vGA}
    s_lshl_b32 {s_w2k}, s3, 11
    s_add_u32 {s_w2k}, {s_w2k}, {WQ}
    s_mov_b32 s18, 0x80000
    s_mov_b32 s19, 0x20000
    s_mov_b32 s22, {WS_BYTES}
    s_mov_b32 s23, 0x20000
    s_mov_b32 s26, 0x200000
    s_mov_b32 s27, 0x20000
    s_lshr_b32 s58, s2, 3
    s_and_b32 s57, s2, 7
    s_lshl_b32 s38, s57, 2
    s_and_b32 s39, s58, 3
    s_add_u32 s38, s38, s39
    s_lshl_b32 {s_ro}, s39, 13
    s_lshl_b32 {s_rw}, s39, 17
    s_lshr_b32 s39, s58, 2
    s_mov_b32 s48, 0xffff0000
    s_mov_b32 s49, 0xffff0000
    s_mov_b32 s50, {LOG2E}
    s_mov_b32 s51, {LOG2E}
    s_mov_b32 {s_eps}, {EPS}
    s_mov_b32 {s_spin}, 0
    s_lshl_b32 {s_t2}, {s_c}, 1
    s_add_u32 {s_t}, {ch}, {s_t2}
    s_lshl_b32 {s_Pg}, {s_t}, 14
    s_add_u32 {s_Pg}, {s_Pg}, {P_OFF}
    s_lshl_b32 {s_P}, {s_r}, 10
    s_add_u32 {s_P}, {s_P}, {s_Pg}
    s_lshl_b32 {s_t2}, {rh}, 13
    s_add_u32 {s_Pg}, {s_Pg}, {s_t2}
    s_lshl_b32 {s_t}, {s_t}, 1
    s_add_u32 {s_t}, {s_t}, {rh}
    s_lshl_b32 {s_Zg}, {s_t}, 11
    s_add_u32 {s_Zg}, {s_Zg}, {Z_OFF}
    s_lshl_b32 {s_Z}, {s_r}, 7
    s_add_u32 {s_Z}, {s_Z}, {s_Zg}
    s_lshl_b32 {s_O}, {s_r}, 1
    s_add_u32 {s_O}, {s_O}, {rh}
    s_lshl_b32 {s_O}, {s_O}, 17
    s_lshl_b32 {s_t}, {s_c}, 12
    s_add_u32 {s_O}, {s_O}, {s_t}
    s_lshl_b32 {s_t}, {ch}, 11
    s_add_u32 {s_O}, {s_O}, {s_t}
    s_add_u32 {s_O2}, {s_O}, 65536
    s_lshl_b32 {s_G}, {s_r}, 13
    s_lshl_b32 {s_t}, {s_c}, 9
    s_add_u32 {s_G}, {s_G}, {s_t}
    s_lshl_b32 {s_t}, s3, 7
    s_add_u32 {s_G}, {s_G}, {s_t}
    s_add_u32 {s_G}, {s_G}, {G_OFF}
    s_lshl_b32 {s_F}, {s_r}, 4
    s_add_u32 {s_F}, {s_F}, {s_c}
    s_lshl_b32 {s_F}, {s_F}, 7
    s_add_u32 {s_F}, {s_F}, {F_OFF}
    s_sub_u32 s7, 0, {rh}
    s_not_b32 s6, s7
    s_mov_b32 s96, s7
    s_mov_b32 s97, s7
    v_mov_b32 v{T}, -1
    v_mov_b32 v{T+1}, -1
    v_mov_b32 v{T+2}, -1
    v_mov_b32 v{T+3}, -1
    v_add_u32 v{vO+1}, {16384-1024}, v{vO}
    v_add_u32 v{vO+2}, {2*(16384-1024)}, v{vO}
    v_add_u32 v{vO+3}, {3*(16384-1024)}, v{vO}
    v_add_u32 v{vOA+1}, 65536, v{vOA}
    v_add_u32 v{vOA+2}, 131072, v{vOA}
    v_xor_b32 v{vOA+3}, 64, v{vOA}
    v_xor_b32 v{vOA+4}, 64, v{vOA+1}
    v_xor_b32 v{vOA+5}, 64, v{vOA+2}
    v_lshlrev_b32 v{vOut}, 10, v{A0}
    v_lshl_add_u32 v{vOut}, v{A1}, 4, v{vOut}
    v_and_b32 v{A2}, 48, v1
    v_and_b32 v{A0}, 15, v1
    v_lshl_add_u32 v{vZld}, v{A0}, 7, v{A2}
    s_lshl_b32 {s_t}, s3, 7
    s_add_u32 {s_t}, {s_t}, {ZSCR}
    v_add_u32 v{vZw}, {s_t}, v{A2}
    v_and_b32 v{A2}, 3, v1
    s_lshl_b32 {s_t}, {ch}, 7
    s_lshl_b32 {s_t2}, {rh}, 6
    s_add_u32 {s_t}, {s_t}, {s_t2}
    s_add_u32 {s_t}, {s_t}, {ZSCR}
    v_lshl_add_u32 v{vZr}, v{A2}, 4, {s_t}
    v_lshlrev_b32 v{vGo}, 6, v{A1}
    v_lshl_add_u32 v{vGo}, v{A2}, 4, v{vGo}
    s_lshl_b32 {s_t}, {s_c}, 7
    s_add_u32 {s_t}, {s_t}, {F1_OFF}
    v_lshl_add_u32 v{vFa}, v{A0}, 11, {s_t}
    s_lshr_b32 {s_t}, {s_R64}, 1
    s_lshl_b32 {s_t}, {s_t}, 11
    s_add_u32 {s_t}, {s_t}, {F_OFF}
    v_lshl_add_u32 v{vF2a}, v{A0}, 7, {s_t}
    v_mov_b32 v{ONES}, 0x3f803f80
    v_mov_b32 v{ONES+1}, 0x3f803f80
    v_mov_b32 v{ONES+2}, 0x3f803f80
    v_mov_b32 v{ONES+3}, 0x3f803f80
    s_lshl_b32 {s_wos}, {s_C64}, 7
    s_lshl_b32 {s_t}, {ch}, 13
    s_add_u32 {s_wos}, {s_wos}, {s_t}
    s_lshl_b32 {s_Og}, {s_R64}, 1
    s_add_u32 {s_Og}, {s_Og}, {ch}
    s_lshl_b32 {s_Gg}, {s_Og}, 11
    s_add_u32 {s_Gg}, {s_Gg}, {G_OFF+48}
    s_lshl_b32 {s_out}, {s_Og}, 15
    s_lshl_b32 {s_Og}, {s_Og}, 16
    s_lshl_b32 {s_t2}, {rh}, 15
    s_add_u32 {s_Og}, {s_Og}, {s_t2}
    s_lshl_b32 {s_t}, {s_C64}, 7
    s_add_u32 {s_out}, {s_out}, {s_t}
    s_lshl_b32 {s_t}, {rh}, 6
    s_add_u32 {s_out}, {s_out}, {s_t}
    v_add_u32 v{vFw}, {s_w4k}, v{vL16}
    s_lshl_b32 {s_t}, s3, 11
    v_add_u32 v{vSw}, {s_t}, v{vL16}
    v_xor_b32 v{vSr}, 4096, v{vSw}
    v_bfe_u32 v{U0}, v1, 3, 1
    v_and_b32 v{U1}, 3, v1
    v_lshl_add_u32 v{U0}, v{U0}, 2, v{U1}
    v_and_b32 v{U1}, 1, v{U0}
    v_lshlrev_b32 v{U1}, 4, v{U1}
    v_mov_b32 v{U2}, 0x3f80
    v_lshlrev_b32 v{U1}, v{U1}, v{U2}
    v_bfe_u32 v{U2}, v1, 2, 1
    v_lshlrev_b32 v{U2}, 5, v{U2}
    v_xor_b32 v{U2}, v{U2}, v1
    v_and_b32 v{U2}, 48, v{U2}
    v_lshrrev_b32 v{U0}, 1, v{U0}
    v_or_b32 v{U0}, v{U0}, v{U2}
    ''')
    for jj in range(4):
        setup += [f'v_cmp_eq_u32 vcc, {jj}, v{U0}', f'v_cndmask_b32 v{SEL+jj}, 0, v{U1}, vcc']
    if skip3:
        setup += [f'v_lshrrev_b32 v{U0}, 3, v1', f'v_add_u32 v{U1}, {SPILL}, v{vL16}', f'v_cmp_eq_u32 vcc, 3, v{U0}', f'v_cndmask_b32 v1, v{vL16}, v{U1}, vcc']
    def o_store(rt, hd, reg, tag='ost'):
        e(f'buffer_store_dwordx4 {vr(reg,4)}, v{vLX}, {WS}, {s_O if rt == 0 else s_O2} offen offset:{1024*hd} sc1', tag=tag)
    def pz_store(preg, zreg, tag):
        e(f's_mov_b64 exec, {s_hm}')
        e(f'buffer_store_dwordx4 {vr(preg,4)}, v{vLX}, {WS}, {s_P} offen sc1', tag=tag)
        e('s_mov_b64 exec, 0xff')
        e(f'buffer_store_dwordx4 {vr(zreg,4)}, v{vL16}, {WS}, {s_Z} offen sc1', tag=tag)
    def g_store():
        e('s_mov_b32 exec_lo, 0xf0000000\n s_mov_b32 exec_hi, 0xf0000000')
        e(f'buffer_store_dwordx4 {vr(vGacc,4)}, v{vGo}, {WS}, {s_G} offen sc1', tag='poi')
        e('s_mov_b64 exec, -1')
    for f in x_dma_ops(0):
        f()
        for _ in range(6):
            if wset: e(wset.pop(0))
    e(f's_cmp_ge_u32 {s_c}, 8\n s_cselect_b32 s12, s64, s6\n s_cselect_b32 s13, s65, s7')
    mid_ = lines(f"""
    v_lshlrev_b32 v{vL16}, 4, v1
    s_mov_b32 s24, s34
    s_mov_b32 s25, s35
    s_mov_b32 s34, 1024
    s_mov_b32 s35, 0x20000
    v_add_u32 v{B0}, s59, v{vL16}
    v_and_b32 v{B0}, 1023, v{B0}
    v_lshl_add_u32 v{vO}, v{A0}, 10, v{A3}
    s_cmp_ge_u32 s3, 2 @ s_cselect_b32 s16, s66, s16 @ s_cselect_b32 s17, s67, s17
    s_add_u32 s20, s30, {ws_base} @ s_addc_u32 s21, s31, 0
    s_mov_b32 s4, s30
    s_mov_b32 s5, s31
    s_mov_b32 s30, 256
    s_mov_b32 s31, 0x20000
    v_mov_b32 v{vZero}, 0
    """)
    def nonce_pub():
        lab = e.label('L_nn')
        e(f"""
        s_or_b32 {s_t}, s2, s3
        s_cmp_lg_u32 {s_t}, 0
        s_cbranch_scc1 {lab}
        s_or_b32 s68, s68, 1
        v_mov_b32 v{vN}, s68
        v_mov_b32 v{vN+1}, s69
        s_mov_b64 exec, 1
        """)
        e(f'buffer_store_dwordx2 {vr(vN,2)}, v{vZero}, {DBG}, 0 offen sc1', count=False)
        e(f's_mov_b64 exec, -1')
        e.place(lab)
    todo = [x.replace('@', '\n') for x in mid_] + [nonce_pub] + pre + setup[:len(setup) - nweave]
    setup = setup[len(setup) - nweave:]
    def some(k):
        for _ in range(k):
            if todo: run(todo.pop(0))
    for f in w_dma_ops(0):
        f(); some(per_dma)
    e(f's_mov_b32 m0, {GWL}')
    some(2)
    e(f'buffer_load_dwordx4 v{B0}, {GW}, 0 offen lds', tag='kv0')
    some(per_dma)
    for f in x_dma_ops(1) + w_dma_ops(1):
        f(); some(per_dma)
    def pf3_touch():
        lab = e.label('L_p3')
        e(f'''
        s_and_b32 {s_t}, s2, 0xc2
        s_cmp_ge_u32 {s_t}, 0xc0
        s_cbranch_scc1 {lab}
        s_bitcmp1_b32 s2, 1
        s_cbranch_scc1 {lab}
        s_lshr_b32 {s_t}, s2, 3
        s_lshl_b32 {s_t}, {s_t}, 2
        s_add_u32 {s_t}, {s_t}, s3
        s_lshl_b32 {s_t}, {s_t}, 10
        s_add_u32 {s_t}, {s_t}, 384
        v_mul_u32_u24 v204, {96*64}, v{vL16}
        s_mov_b64 exec, 0xffff
        ''')
        e(f'buffer_load_dword v205, v204, {W}, {s_t} offen', count=False)
        e('s_mov_b64 exec, -1')
        e.place(lab)
    some(999)
    if pf3 == 1: pf3_touch()
    if tlb:
        e('s_mov_b64 exec, 1')
        lst = [(OUT, s_out), (WO, s_wos), (WS, s_Og), (WS, s_O)]
        if tlb > 1: lst += [(WS, s_O2), (WS, s_Pg), (WS, s_Gg), (WS, s_F)]
        for i_, (srd, so) in enumerate(lst):
            e(f'buffer_load_dword v{200+i_}, v{vZero}, {srd}, {so} offen', tag='tlb')
        e('s_mov_b64 exec, -1')
    pz_store(T, T, 'pst0'); e('s_mov_b64 exec, -1')
    def lds(base, addr):
        return base + (addr >> 16), addr & 0xffff
    def kv_reads(ks):
        j, t = divmod(ks, 4)
        sl = CSLOT[j]
        buf = Wf + (ks % 2) * 8
        ops = []
        for sec in range(2):
            r, o = lds(vXA + 3*t, sl + sec * 4096)
            ops.append(f'ds_read_b128 {ar(ks*8 + sec*4, 4)}, v{r} offset:{o}')
        for sec in range(2):
            for hf in range(2):
                r, o = lds(vWA, sl + 16384 + t * 4096 + sec * 2048 + hf * 512)
                ops.append(f'ds_read_b64_tr_b16 {vr(buf + sec*4 + hf*2, 2)}, v{r} offset:{o}')
        if t == 0:
            r, o = lds(vGA, sl)
            ops.append(f'ds_read_b32 v{vGt + (j & 1)}, v{r} offset:{o}')
        if ks in (1, 2):
            for q in range(2):
                qq = (ks - 1) * 2 + q
                ops.append(f'ds_read2_b32 {vr(vGW + 2*qq, 2)}, v{vGWa} offset0:{qq*64} offset1:{qq*64+32}')
        return ops
    def kv_mfmas(ks):
        buf = Wf + (ks % 2) * 8
        ops = []
        for sec, acc in ((0, accK), (1, accV)):
            for rt in range(2):
                c = '0' if ks == 0 else vr(acc + rt*16, 16)
                if 'k' in x16:
                    t = []
                    for h in range(2):
                        a = acc + ((ks % 2) * 4 + rt * 2 + h) * 4
                        t.append(f'v_mfma_f32_16x16x32_bf16 {vr(a,4)}, {ar(ks*8+h*4,4)}, {vr(buf + sec*4, 4)}, {"0" if ks < 2 else vr(a,4)}')
                    ops.append('\n'.join(t))
                    continue
                ops.append(f'v_mfma_f32_32x32x16_bf16 {vr(acc + rt*16, 16)}, {ar(ks*8 + rt*4, 4)}, {vr(buf + sec*4, 4)}, {c}')
        return ops
    slow = []
    stream = []
    for j in range(2, 8):
        earliest = max(j - look, (j - 4) if j >= 5 else 0, 1 if j == 4 else 0)
        for f in x_dma_ops(j) + w_dma_ops(j): stream.append((earliest, f))
    wq_late = []
    for q in range(8):
        for f in wq_dma_ops(q):
            if q >= 8 - wq_e1: wq_late.append(f)
            else: stream.append((5 if q >= 4 else 4, f))
    nonce_load = f'buffer_load_dwordx4 {vr(vN,4)}, v{vZero}, {DBG}, 0 offen sc1'
    for gI in range(wo_tail):
        ops_ = [(6 if gI == 0 else 7, f) for f in wo_dma_ops(gI)]
        if gI == 0 and g0_pos >= 0:
            stream[48 + g0_pos:48 + g0_pos] = ops_
        else:
            stream.extend(ops_)
    for rt in range(2):
        for hd in range(2):
            stream.append((7, (lambda: issued.__setitem__('poi', issued.get('poi', 0) + 1)) if x_nopoi else (lambda rt=rt, hd=hd: o_store(rt, hd, T, 'poi'))))
    stream.append((7, g_store))
    cur_bar = [-1]
    extra_q = []
    def spin_slow(name, reload, cmp):
        ls = e.label(f'L_{name}s'); lo = e.label(f'L_{name}o')
        e(f'{cmp}\n s_cbranch_vccnz {ls}')
        e.place(lo)
        def s():
            e.place(ls)
            e(f'''
            s_add_u32 {s_spin}, {s_spin}, 1
            s_cmp_gt_u32 {s_spin}, {MAXSPIN}
            s_cbranch_scc1 {lo}
            {reload}
            s_waitcnt vmcnt(0)
            {cmp}
            s_cbranch_vccnz {ls}
            s_branch {lo}
            ''')
        slow.append(s)
    def chunk_barrier(j):
        need = 8 + (2 if j == 0 else 0)
        assert issued.get(f'kv{j}', 0) == need, (j, issued)
        if j == 6: assert not setup
        if j == flag_bar:
            assert issued['nonce'] == 1
            e.wait_tag('nonce')
        e.wait_tag(f'kv{j}', lg=0)
        e('s_barrier')
        if j == 0:
            stamp()
        if j == nonce_bar:
            extra_q.append(lambda: e(nonce_load, tag='nonce'))
            if pf3 == 2: extra_q.append(pf3_touch)
        cur_bar[0] = j
        if j == flag_bar:
            def fl():
                spin_slow('n', nonce_load, f'v_cmp_eq_u32 vcc, 0, v{vN}')
                lf = e.label('L_nf1')
                e(f's_cmp_lg_u32 s3, 0\n s_cbranch_scc1 {lf}\n s_mov_b64 exec, 0xff\n s_add_u32 {s_t}, {s_F}, {F1_OFF - F_OFF}')
                e(f'buffer_store_dwordx4 {vr(vN,4)}, v{vL16}, {WS}, {s_t} offen sc1', count=False)
                e('s_mov_b64 exec, -1')
                e.place(lf)
            extra_q.append(fl)
    g = vGacc
    gate_ops = [f'v_add_f32_dpp v{g}, v{g}, v{g} row_shr:{sh} row_mask:0xf bank_mask:0xf bound_ctrl:0' for sh in (1, 2, 4, 8)]
    gate_ops += [f'v_add_f32_dpp v{g}, v{g}, v{g} row_bcast:15 row_mask:0xa bank_mask:0xf\n v_mul_f32 v{g}, 0xbfb8aa3b, v{g}\n v_exp_f32 v{g}, v{g}',
                 f'v_add_f32 v{g}, 1.0, v{g}\n v_rcp_f32 v{g}, v{g}']
    def issue_one():
        if len(stream) == 1 and gate_ops: return False
        if stream and stream[0][0] <= cur_bar[0]:
            stream.pop(0)[1]()
            return True
        return False
    nsetup = len(setup)
    chunk_barrier(0)
    for op in kv_reads(0): e(op)
    for ks in range(32):
        nxt = ks + 1
        rd = []
        if nxt < 32:
            if nxt % 4 == 0:
                chunk_barrier(nxt // 4)
            rd = kv_reads(nxt)
        mf = kv_mfmas(ks)
        for i in range(4):
            e(mf[i])
            for _ in range(2):
                if rd: e(rd.pop(0))
            kvdone = issued.get('kv7', 0) == 8
            if (i in (1, 3) and not (kvdone and kv_pace == 1 and i == 1)) or (ks < ramp_ks and i == 0) or (ks >= tail_from and len(stream) > 2 * (31 - ks) + (2 if i == 0 else 1)):
                issue_one()
            elif extra_q and i == 2 and not setup:
                extra_q.pop(0)()
            if ks >= 29 and gate_ops: e(gate_ops.pop(0))
            while setup and e.slots < 5:
                e(setup.pop(0))
        while rd: e(rd.pop(0))
        if (ks % 4 == 3 and ks < 28) or ks == 28:
            j = ks // 4
            e(f'v_dot2c_f32_bf16 v{vGacc}, v{vGt + (j & 1)}, v{vGW + j}')
    while issue_one(): pass
    assert not stream
    stamp()
    jit(1)
    def phi_ops(src, n, dst):
        ops = []
        for b in range(0, n, 8):
            for i in range(0, 8, 2):
                ops.append((1, f'v_pk_mul_f32 {vr(T+i,2)}, {vr(src+b+i,2)}, {s_l2e}'))
            for i in range(0, 8, 2):
                ops.append((2, f'v_exp_f32_e64 v{T+i}, v{T+i} clamp'))
                ops.append((2, f'v_exp_f32_e64 v{T+i+1}, v{T+i+1} clamp'))
                ops.append((1, f'v_max_f32 v{src+b+i}, {s_eps}, v{src+b+i}'))
                ops.append((1, f'v_max_f32 v{src+b+i+1}, {s_eps}, v{src+b+i+1}'))
            for i in range(0, 8, 2):
                ops.append((1, f'v_pk_add_f32 {vr(src+b+i,2)}, {vr(src+b+i,2)}, {vr(T+i,2)}'))
            for i in range(0, 8, 2):
                ops.append((1, f'v_cvt_pk_bf16_f32 v{dst+(b+i)//2}, v{src+b+i}, v{src+b+i+1}'))
        return ops
    def dz(q):
        return f'v_mfma_f32_32x32x16_bf16 {vr(DZ,16)}, {vr(PK+q*4,4)}, {vr(ONES,4)}, {"0" if q == 0 else vr(DZ, 16)}'
    def dd(q):
        return f'v_mfma_f32_32x32x16_bf16 {vr(D,16)}, {vr(PK+q*4,4)}, {vr(VF+q*4,4)}, {"0" if q == 0 else vr(D, 16)}'
    def cvtv(q):
        return [(1, f'v_cvt_pk_bf16_f32 v{VF + q*4 + i//2}, v{accV+q*8+i}, v{accV+q*8+i+1}') for i in range(0, 8, 2)]
    fill = []
    for q in range(4):
        blk = phi_ops(accK + q*8, 8, PK + q*4)
        blk = blk[:-4] + cvtv(q) + blk[-4:]
        if q > 0:
            blk = blk[:4] + [(MF, dz(q-1))] + blk[4:8] + [(MF, dd(q-1))] + blk[8:]
        fill += blk
    fill += [(MF, dd(3)), (MF, dz(3)), (SKIP, None)]
    if tailw: fill += [('BUD', tailw), (SKIP, None), (SKIP, None)]
    for j in range(8):
        fill.append((1, f'v_cndmask_b32_e64 v{accK+j}, v{D+j}, v{D+8+j}, {s_m16}'))
        if j % 4 == 3:
            fill.append((2, f'ds_write_b128 v{vSw}, {vr(accK+j-3,4)} offset:{KVSCR + (j//4)*1024}'))
    for j in range(8):
        fill.append((1, f'v_cndmask_b32_e64 v{accK+8+j}, v{DZ+8+j}, v{DZ+j}, {s_m16}'))
        if j % 4 == 3:
            fill.append((2, f'ds_write_b128 v{vZw}, {vr(accK+8+j-3,4)} offset:{(j//4)*64}'))
    R = accV
    def bkv():
        assert issued['poi'] == 5
        if we_to: e.wait_tag('poi', lg=0)
        else: e.wait(vm=0, lg=0)
        e('s_barrier')
        e(f'ds_read_b128 {vr(R,4)}, v{vSr} offset:{KVSCR}')
        e(f'ds_read_b128 {vr(R+4,4)}, v{vSr} offset:{KVSCR+1024}')
        e(f'ds_read_b128 {vr(R+8,4)}, v{vZr}')
        e(f'ds_read_b128 {vr(R+12,4)}, v{vZr} offset:256')
    fill += [(SKIP, None)] * (2 if tailw else 1) + [(1, bkv), (SKIP, None), (SKIP, None)]
    if tailw:
        fill += [(SKIP, None), (SKIP, None)]
        fill += [(1, f'v_add_f32 v{R+i}, v{R+i}, v{accK+i}') for i in range(8)]
        fill += [(1, f'v_add_f32 v{R+8+i}, v{R+8+i}, v{R+12+i}') for i in range(4)]
        fill += [(1, f'v_cvt_pk_bf16_f32 v{R+12+i//2}, v{R+i}, v{R+i+1}') for i in range(0, 8, 2)]
        fill += [(SKIP, None)]
    t0 = [None]
    cnt = [0]
    def pub():
        if not tailw:
            for i in range(0, 8, 2):
                e(f'v_pk_add_f32 {vr(R+i,2)}, {vr(R+i,2)}, {vr(accK+i,2)}')
            e(f'v_pk_add_f32 {vr(R+8,2)}, {vr(R+8,2)}, {vr(R+12,2)}')
            e(f'v_pk_add_f32 {vr(R+10,2)}, {vr(R+10,2)}, {vr(R+14,2)}')
            for i in range(0, 8, 2):
                e(f'v_cvt_pk_bf16_f32 v{R+12+i//2}, v{R+i}, v{R+i+1}')
        jit(2)
        pz_store(R + 12, R + 8, 'pst')
        lf = e.label('L_nf')
        e(f's_cmp_lg_u32 s3, 0\n s_cbranch_scc1 {lf}')
        e(f'buffer_store_dwordx4 {vr(vN,4)}, v{vL16}, {WS}, {s_F} offen sc1', count=False)
        e.place(lf)
        e('s_mov_b64 exec, -1')
        stamp()
        t0[0] = cnt[0]
    fill.append((1, pub))
    def q_reads(ks):
        buf = Wf + (ks % 4) * 4
        ops = []
        for hf in range(2):
            r, o = lds(vWA, WQ + ks * 2048 + hf * 512)
            ops.append(f'ds_read_b64_tr_b16 {vr(buf + hf*2, 2)}, v{r} offset:{o}')
        return ops
    def q_mf(n):
        ks, rt = divmod(n, 2)
        buf = Wf + (ks % 4) * 4
        c = '0' if ks == 0 else vr(accQ + rt*16, 16)
        if 'q' in x16:
            t = []
            for h in range(2):
                a = accQ + ((ks % 2) * 4 + rt * 2 + h) * 4
                t.append(f'v_mfma_f32_16x16x32_bf16 {vr(a,4)}, {vr(buf,4)}, {ar(ks*8+(h)*4,4)}, {"0" if ks < 2 else vr(a,4)}')
            return '\n'.join(t)
        return f'v_mfma_f32_32x32x16_bf16 {vr(accQ+rt*16,16)}, {vr(buf,4)}, {ar(ks*8+rt*4,4)}, {c}'
    ZG = GA + 32
    z_load = f'buffer_load_dwordx4 {vr(ZG,4)}, v{vZld}, {WS}, {s_Zg} offen sc1'
    def p_load(q):
        return f'buffer_load_dwordx4 {vr(GA+q*4,4)}, v{vLX}, {WS}, {s_Pg if q < 4 else s_t} offen offset:{(q%4)*1024} sc1'
    def gather_ops():
        ops = [lambda: e(z_load, tag='ga')]
        for q in range(8):
            def f(q=q):
                if q == 4:
                    e(f's_add_u32 {s_t}, {s_Pg}, 4096')
                e(p_load(q), tag='ga')
            ops.append(f)
        return ops
    f1_load = f'buffer_load_dwordx2 {vr(vFl,2)}, v{vFa}, {WS}, 0 offen sc1'
    f2_load = f'buffer_load_dwordx2 {vr(vFl,2)}, v{vF2a}, {WS}, 0 offen sc1'
    fcmp = f'v_cmp_ne_u64 vcc, {vr(vN,2)}, {vr(vFl,2)}'
    e(f1_load, tag='fl')
    vw = []
    for gI in range(wo_tail, 7): vw += [(gI, f) for f in wo_dma_ops(gI)]
    gq = gather_ops()
    ne = [0]
    for k_ in range(e1_lead):
        run(fill.pop(0)[1])
        if k_ % e1_step == 0 and wq_late: wq_late.pop(0)()
    assert issued['wq'] == 16
    e.wait_tag('wq', lg=0)
    e('s_barrier')
    QLA = 2
    for ks in range(QLA):
        for op in q_reads(ks): e(op)
    n = 0
    checked = [False]
    mid = [False]
    first = True
    nwo = [0]
    def wo_ok():
        return vw and (vw[0][0] < 5 or mid[0])
    while n < 64:
        if first:
            first = False; e.slots = 0
        elif fill and fill[0][0] == MF:
            e(fill.pop(0)[1])
        else:
            e(q_mf(n))
            ks, rt = divmod(n, 2)
            if ks + QLA < 32:
                e(q_reads(ks + QLA)[rt])
            n += 1
        cnt[0] += 1
        if n == midq and not mid[0]:
            assert t0[0] is not None and midq >= 33
            mid[0] = True
            e('s_barrier')
        if t0[0] is None and we_from <= cnt[0] <= we_to and cnt[0] % wo_gap == 0 and wo_ok():
            vw.pop(0)[1]()
        if t0[0] is not None:
            dt = cnt[0] - t0[0]
            if dt < gdelay:
                if wo_ok() and dt % wo_gap == 0 and dt < gdelay - 3 and nwo[0] < wo_max:
                    vw.pop(0)[1](); nwo[0] += 1
            else:
                if not checked[0]:
                    ne[0] = (28 - len(vw)) // 4
                    spin_slow('f', f1_load, fcmp)
                    checked[0] = True
                if gq:
                    gq.pop(0)()
                elif wo_ok() and dt >= gdelay + gpause and dt % wo_gap == 0 and n <= wo_stop:
                    vw.pop(0)[1]()
        while fill and fill[0][0] != MF:
            if fill[0][0] == SKIP:
                fill.pop(0); break
            if fill[0][0] == 'BUD':
                budget = fill.pop(0)[1]; continue
            if e.slots + fill[0][0] > budget: break
            run(fill.pop(0)[1])
    assert t0[0] is not None and checked[0] and not gq and not fill and mid[0]
    stamp()
    if merge != 2:
        PQ = accK
        n_early = ne[0]
        ph = phi_ops(accQ, 32, PQ)
        nphi = min(len(vw), phi_max)
        left = [nphi]
        step = max(1, (len(ph) // 2 if merge else len(ph)) // (nphi + 1))
        pc = [0]
        def phi_some(k):
            for _ in range(k):
                if ph:
                    run(ph.pop(0)[1]); pc[0] += 1
                    if pc[0] % step == 0 and vw and left[0]:
                        vw.pop(0)[1](); left[0] -= 1
        phi_some(28 if merge else 999)
        stamp()
        TZ = 28
        lab_zs = e.label('L_zslow'); lab_zo = e.label('L_zok')
        zchk = f'''
        v_max3_u32 v{TZ}, v{ZG}, v{ZG+1}, v{ZG+2}
        v_max_u32 v{TZ}, v{TZ}, v{ZG+3}
        v_cmp_eq_u32 vcc, -1, v{TZ}
        '''
        e(zchk)
        e(f's_cbranch_vccnz {lab_zs}')
        e.place(lab_zo)
        def zslow():
            e.place(lab_zs)
            e(f'''
            s_or_b32 {s_mask}, vcc_lo, vcc_hi
            s_lshr_b32 {s_t}, {s_mask}, 16
            s_or_b32 {s_mask}, {s_mask}, {s_t}
            s_lshl_b32 {s_t}, {rh}, 3
            s_lshr_b32 {s_mask}, {s_mask}, {s_t}
            s_add_u32 {s_spin}, {s_spin}, 1
            s_cmp_gt_u32 {s_spin}, {MAXSPIN}
            s_cbranch_scc1 {lab_zo}
            s_add_u32 {s_t}, {s_Pg}, 4096
            s_waitcnt vmcnt(0)
            {z_load}
            ''')
            for q in range(8):
                l = e.label('L_zq')
                e(f's_bitcmp0_b32 {s_mask}, {q}\n s_cbranch_scc1 {l}')
                e(p_load(q))
                e.place(l)
            e('s_waitcnt vmcnt(0)')
            e(zchk)
            e(f's_cbranch_vccnz {lab_zs}\n s_branch {lab_zo}')
        slow.append(zslow)
        D2 = 224; ZP = 212; FA = 216; FB = GA
        zops = []
        for ro in (8, 4, 2, 1):
            for i in range(4):
                zops.append(f'v_add_f32_dpp v{ZG+i}, v{ZG+i}, v{ZG+i} row_ror:{ro} row_mask:0xf bank_mask:0xf')
        zops += [f'v_cvt_pk_bf16_f32 v{TZ}, v{ZG}, v{ZG+1}', f'v_cvt_pk_bf16_f32 v{TZ+1}, v{ZG+2}, v{ZG+3}',
                 f'v_cndmask_b32_e64 v{ZP}, v{TZ}, 0, {s_rhm}', f'v_cndmask_b32_e64 v{ZP+1}, v{TZ+1}, 0, {s_rhm}',
                 f'v_cndmask_b32_e64 v{ZP+2}, 0, v{TZ}, {s_rhm}', f'v_cndmask_b32_e64 v{ZP+3}, 0, v{TZ+1}, {s_rhm}']
        def red_mf(q):
            return f'v_mfma_f32_32x32x16_bf16 {vr(D2,16)}, {vr(SEL,4)}, {vr(GA+q*4,4)}, {"0" if q == 0 else vr(D2,16)}'
        for q in range(8):
            e(red_mf(q))
            if merge:
                for _ in range(3):
                    if zops: e(zops.pop(0))
                while ph and e.slots < 6: phi_some(1)
            elif q >= 4:
                for _ in range(6):
                    if zops: e(zops.pop(0))
        assert not zops
        if merge: phi_some(8)
        lab_gslow = e.label('L_gslow'); lab_gok = e.label('L_gok')
        e(f'v_cmp_u_f32 vcc, v{D2}, v{D2}')
        e(f's_cbranch_vccnz {lab_gslow}')
        e.place(lab_gok)
        def gslow():
            e.place(lab_gslow)
            e(f'''
            s_add_u32 {s_spin}, {s_spin}, 1
            s_cmp_gt_u32 {s_spin}, {MAXSPIN}
            s_cbranch_scc1 {lab_gok}
            s_add_u32 {s_t}, {s_Pg}, 4096
            ''')
            for q in range(8): e(p_load(q))
            e('s_waitcnt vmcnt(0)')
            e(f'v_max_u32 v{TZ}, v{GA}, v{GA+1}')
            for q in range(2, 32, 2):
                e(f'v_max3_u32 v{TZ}, v{TZ}, v{GA+q}, v{GA+q+1}')
            e(f'v_cmp_eq_u32 vcc, -1, v{TZ}\n s_cbranch_vccnz {lab_gslow}')
            for q in range(8): e(red_mf(q))
            e(f's_nop 15\n s_branch {lab_gok}')
        slow.append(gslow)
        stamp()
        for jj in range(4):
            e(f'v_cvt_pk_bf16_f32 v{D2+8+jj}, v{D2+2*jj}, v{D2+2*jj+1}')
        for jj in range(4):
            e(f'v_cndmask_b32_e64 v{FA+jj}, v{D2+8+jj}, v{ZP+jj}, {s_m16}')
        e(f'ds_write_b128 v{vSw}, {vr(FA,4)} offset:{GXSCR}')
        for jj in range(4):
            e(f'v_cndmask_b32_e64 v{FA+4+jj}, v{ZP+jj}, v{D2+8+jj}, {s_m16}')
        e(f'ds_write_b128 v{vSw}, {vr(FA+4,4)} offset:{GXSCR+1024}')
        OD = 64
        def o_mf(rt, hd, fr, first):
            b = OD + (rt*2 + hd) * 16
            e(f'v_mfma_f32_32x32x16_bf16 {vr(b,16)}, {vr(fr+hd*4,4)}, {vr(PQ+(rt*2+hd)*4,4)}, {"0" if first else vr(b,16)}')
        def o_fin(rt, hd):
            b = OD + (rt*2 + hd) * 16
            num = b + (0 if hd == 0 else 8); den = b + (8 if hd == 0 else 0)
            e(f'v_add_f32 v{den}, {s_eps}, v{den}')
            e(f'v_rcp_f32 v{den}, v{den}')
            for i in range(0, 8, 2):
                e(f'v_pk_mul_f32 {vr(num+i,2)}, {vr(num+i,2)}, {vr(den,2)} op_sel_hi:[1,0]')
            for i in range(0, 8, 2):
                e(f'v_cvt_pk_bf16_f32 v{den+4+i//2}, v{num+i}, v{num+i+1}')
            o_store(rt, hd, den + 4)
        def bgx():
            e.wait(lg=0)
            e('s_barrier')
            e(f'ds_read_b128 {vr(FB,4)}, v{vSr} offset:{GXSCR}')
            e(f'ds_read_b128 {vr(FB+4,4)}, v{vSr} offset:{GXSCR+1024}')
        if not merge:
            o_mf(0, 0, FA, True); o_mf(1, 0, FA, True)
            bgx()
            o_mf(0, 1, FA, True); o_mf(1, 1, FA, True)
            o_mf(0, 0, FB, False); o_mf(1, 0, FB, False); o_mf(0, 1, FB, False); o_mf(1, 1, FB, False)
            e(f2_load, tag='f2l')
            o_fin(0, 0); jit(3); o_fin(1, 0); o_fin(0, 1); jit(4); o_fin(1, 1)
        else:
            left[0] = 0
            while len(ph) > 56: phi_some(1)
            o_mf(0, 0, FA, True); phi_some(4); o_mf(0, 1, FA, True); phi_some(4)
            bgx()
            e(f2_load, tag='f2l')
            phi_some(12)
            o_mf(0, 0, FB, False); phi_some(4); o_mf(0, 1, FB, False)
            while len(ph) > 28: phi_some(1)
            phi_some(2)
            o_mf(1, 0, FA, True); phi_some(4); o_mf(1, 0, FB, False)
            phi_some(99)
            o_fin(0, 0)
            o_mf(1, 1, FA, True); o_mf(1, 1, FB, False)
            o_fin(0, 1); o_fin(1, 0); o_fin(1, 1)
        stamp()

    else:
        PQ = accK
        n_early = ne[0]
        TM = 80; TZ = 28
        D2 = 224; ZP = 212; FA = 216; FB = GA
        nphi = min(len(vw), phi_max)
        Mo = lambda b: [f'v_pk_mul_f32 {vr(TM+b*8+i,2)}, {vr(accQ+b*8+i,2)}, {s_l2e}' for i in range(0, 8, 2)]
        def Xo(b):
            r = []
            for i in range(0, 8, 2):
                r += [f'v_exp_f32_e64 v{TM+b*8+i}, v{TM+b*8+i} clamp', f'v_exp_f32_e64 v{TM+b*8+i+1}, v{TM+b*8+i+1} clamp',
                      f'v_max_f32 v{accQ+b*8+i}, {s_eps}, v{accQ+b*8+i}', f'v_max_f32 v{accQ+b*8+i+1}, {s_eps}, v{accQ+b*8+i+1}']
            return r
        Ao = lambda b: [f'v_pk_add_f32 {vr(accQ+b*8+i,2)}, {vr(accQ+b*8+i,2)}, {vr(TM+b*8+i,2)}' for i in range(0, 8, 2)]
        Co = lambda b: [f'v_cvt_pk_bf16_f32 v{PQ+b*4+i//2}, v{accQ+b*8+i}, v{accQ+b*8+i+1}' for i in range(0, 8, 2)]
        lab_zs = e.label('L_zslow'); lab_zo = e.label('L_zok')
        zchk = f"""
        v_max3_u32 v{TZ}, v{ZG}, v{ZG+1}, v{ZG+2}
        v_max_u32 v{TZ}, v{TZ}, v{ZG+3}
        v_cmp_eq_u32 vcc, -1, v{TZ}
        """
        stamp(True)
        e(zchk)
        for b in range(4):
            for op in Mo(b): e(op)
        e(f's_cbranch_vccnz {lab_zs}')
        e.place(lab_zo)
        def zslow():
            e.place(lab_zs)
            e(f"""
            s_or_b32 {s_mask}, vcc_lo, vcc_hi
            s_lshr_b32 {s_t}, {s_mask}, 16
            s_or_b32 {s_mask}, {s_mask}, {s_t}
            s_lshl_b32 {s_t}, {rh}, 3
            s_lshr_b32 {s_mask}, {s_mask}, {s_t}
            s_add_u32 {s_spin}, {s_spin}, 1
            s_cmp_gt_u32 {s_spin}, {MAXSPIN}
            s_cbranch_scc1 {lab_zo}
            s_add_u32 {s_t}, {s_Pg}, 4096
            s_waitcnt vmcnt(0)
            {z_load}
            """)
            for q in range(8):
                l = e.label('L_zq')
                e(f's_bitcmp0_b32 {s_mask}, {q}\n s_cbranch_scc1 {l}')
                e(p_load(q))
                e.place(l)
            e('s_waitcnt vmcnt(0)')
            e(zchk)
            e(f's_cbranch_vccnz {lab_zs}\n s_branch {lab_zo}')
        slow.append(zslow)
        stamp()
        zops = []
        for ro in (8, 4, 2, 1):
            for i in range(4):
                zops.append(f'v_add_f32_dpp v{ZG+i}, v{ZG+i}, v{ZG+i} row_ror:{ro} row_mask:0xf bank_mask:0xf')
        zops += [f'v_cvt_pk_bf16_f32 v{TZ}, v{ZG}, v{ZG+1}', f'v_cvt_pk_bf16_f32 v{TZ+1}, v{ZG+2}, v{ZG+3}',
                 f'v_cndmask_b32_e64 v{ZP}, v{TZ}, 0, {s_rhm}', f'v_cndmask_b32_e64 v{ZP+1}, v{TZ+1}, 0, {s_rhm}',
                 f'v_cndmask_b32_e64 v{ZP+2}, 0, v{TZ}, {s_rhm}', f'v_cndmask_b32_e64 v{ZP+3}, 0, v{TZ+1}, {s_rhm}']
        def red_mf(q):
            return f'v_mfma_f32_32x32x16_bf16 {vr(D2,16)}, {vr(SEL,4)}, {vr(GA+q*4,4)}, {"0" if q == 0 else vr(D2,16)}'
        xq = Xo(0)[:pre_x]
        for op in xq: e(op)
        xq = zops + Xo(0)[pre_x:] + Xo(1)
        def fillq(q, bud):
            while q and e.slots < bud: e(q.pop(0))
        left = nphi
        stamp(True)
        e.wait_tag('ga')
        stamp(True)
        for q in range(8):
            e(red_mf(q))
            if left and q % 2 == 1:
                vw.pop(0)[1](); left -= 1
            fillq(xq, 6)
        stamp(True)
        for _ in range(8):
            if xq: e(xq.pop(0))
        lab_gslow = e.label('L_gslow'); lab_gok = e.label('L_gok')
        cv4 = [f'v_cvt_pk_bf16_f32 v{D2+8+jj}, v{D2+2*jj}, v{D2+2*jj+1}' for jj in range(4)]
        e(f'v_cmp_u_f32 vcc, v{D2}, v{D2}')
        for op in cv4: e(op)
        e(f's_cbranch_vccnz {lab_gslow}')
        e.place(lab_gok)
        def gslow():
            e.place(lab_gslow)
            e(f"""
            s_add_u32 {s_spin}, {s_spin}, 1
            s_cmp_gt_u32 {s_spin}, {MAXSPIN}
            s_cbranch_scc1 {lab_gok}
            s_add_u32 {s_t}, {s_Pg}, 4096
            """)
            for q in range(8): e(p_load(q))
            e('s_waitcnt vmcnt(0)')
            e(f'v_max_u32 v{TZ}, v{GA}, v{GA+1}')
            for q in range(2, 32, 2):
                e(f'v_max3_u32 v{TZ}, v{TZ}, v{GA+q}, v{GA+q+1}')
            e(f'v_cmp_eq_u32 vcc, -1, v{TZ}\n s_cbranch_vccnz {lab_gslow}')
            for q in range(8): e(red_mf(q))
            for op in cv4: e(op)
            e(f's_branch {lab_gok}')
        slow.append(gslow)
        assert not any('dpp' in x or 'cndmask' in x for x in xq)
        stamp(True)
        for jj in range(4):
            e(f'v_cndmask_b32_e64 v{FA+jj}, v{D2+8+jj}, v{ZP+jj}, {s_m16}')
        e(f'ds_write_b128 v{vSw}, {vr(FA,4)} offset:{GXSCR}')
        for jj in range(4):
            e(f'v_cndmask_b32_e64 v{FA+4+jj}, v{ZP+jj}, v{D2+8+jj}, {s_m16}')
        e(f'ds_write_b128 v{vSw}, {vr(FA+4,4)} offset:{GXSCR+1024}')
        while xq: e(xq.pop(0))
        for op in Ao(0): e(op)
        stamp(True)
        e.wait(lg=0)
        e('s_barrier')
        stamp(True)
        e(f'ds_read_b128 {vr(FB,4)}, v{vSr} offset:{GXSCR}')
        e(f'ds_read_b128 {vr(FB+4,4)}, v{vSr} offset:{GXSCR+1024}')
        stamp()
        for _ in range(wo_afterbgx):
            if vw: vw.pop(0)[1]()
        e(f2_load, tag='f2l')
        for op in Ao(1) + Co(0) + Co(1): e(op)
        ODs = {(0, 0): 64, (0, 1): 224, (1, 0): 184, (1, 1): 112}
        def o_mf(rt, hd, fr, first):
            b = ODs[(rt, hd)]
            e(f'v_mfma_f32_32x32x16_bf16 {vr(b,16)}, {vr(fr+hd*4,4)}, {vr(PQ+(rt*2+hd)*4,4)}, {"0" if first else vr(b,16)}')
        def fin_ops(rt, hd, pk):
            b = ODs[(rt, hd)]
            num = b + (0 if hd == 0 else 8); den = b + (8 if hd == 0 else 0)
            r = [f'v_add_f32 v{den}, {s_eps}, v{den}', f'v_rcp_f32 v{den}, v{den}']
            if pk: r += [f'v_pk_mul_f32 {vr(num+i,2)}, {vr(num+i,2)}, {vr(den,2)} op_sel_hi:[1,0]' for i in range(0, 8, 2)]
            else: r += [f'v_mul_f32 v{num+i}, v{num+i}, v{den}' for i in range(8)]
            r += [f'v_cvt_pk_bf16_f32 v{den+4+i//2}, v{num+i}, v{num+i+1}' for i in range(0, 8, 2)]
            r.append(lambda: o_store(rt, hd, den + 4))
            return r
        stamp(True)
        xq = Xo(2) + Xo(3)
        for (hd, fr, first) in ((0, FA, True), (1, FA, True), (0, FB, False), (1, FB, False)):
            o_mf(0, hd, fr, first); fillq(xq, 6)
        while xq: e(xq.pop(0))
        stamp(True)
        for op in Ao(2) + Ao(3) + Co(2) + Co(3): e(op)
        stamp(True)
        f0 = fin_ops(0, 0, False); f1 = fin_ops(0, 1, False)
        fq = f0[:2] + f1[:2] + f0[2:] + f1[2:]
        for (hd, fr, first) in ((0, FA, True), (0, FB, False), (1, FA, True), (1, FB, False)):
            o_mf(1, hd, fr, first)
            while fq and e.slots < 6: run(fq.pop(0))
        while fq: run(fq.pop(0))
        stamp(True)
        jit(3)
        f0 = fin_ops(1, 0, True); f1 = fin_ops(1, 1, True)
        for x in f0[:2] + f1[:2] + f0[2:] + f1[2:]: run(x)
        stamp()
        stamp(True)
    def wo_read_ops(g):
        ops = []
        for t in range(4):
            i = g * 4 + t
            for gm in range(2):
                for hf in range(2):
                    r, o = lds(vOA + gm*3, WOG[g] + hf*4096 + t*1024)
                    ops.append(f'ds_read_b64_tr_b16 {ar((i*2+gm)*4 + hf*2, 2)}, v{r} offset:{o}')
        return ops
    rdq = []
    for gI in range(n_early): rdq += wo_read_ops(gI)
    n_mid = (28 - len(vw)) // 4
    late = [f for _, f in vw] + wo_dma_ops(7)
    nlate = len(late)
    for f in late: f()
    spin_slow('h', f2_load, fcmp)
    if n_mid > n_early:
        e('s_barrier')
        for gI in range(n_early, n_mid): rdq += wo_read_ops(gI)
    ACC = 192
    zq = [f'v_pk_mov_b32 {vr(ACC+i,2)}, 0, 0' for i in range(0, 32, 2)] + [f'v_and_b32 v{vGo2}, 0x1f0, v{vL16}', f'v_lshlrev_b32 v{vGo2}, 2, v{vGo2}', f's_mov_b32 {s_mask}, 0', f'v_xor_b32 v46, 8192, v{vFw}']
    nrd = 0
    while rdq and nrd < rd_pre:
        e(rdq.pop(0)); nrd += 1
    if ost_wait: e.wait_tag('ost')
    stamp()
    def OF(i): return 48 + i*4 if i < 20 else 144 + (i - 20) * 4
    NG = 32 // gs
    def o_load(i):
        if i % 4 == 0:
            e(f's_add_u32 {s_t}, {s_ro}, {(i//4)*4096}\n s_and_b32 {s_t}, {s_t}, 0x7fff\n s_add_u32 {s_t}, {s_t}, {s_Og}')
        e(f'buffer_load_dwordx4 {vr(OF(i),4)}, v{vLX}, {WS}, {s_t} offen offset:{(i%4)*1024} sc1', tag=f'o{i}')
    def o_reload(g):
        i = g * gs
        e(f's_add_u32 {s_t}, {s_ro}, {(i//4)*4096}\n s_and_b32 {s_t}, {s_t}, 0x7fff\n s_add_u32 {s_t}, {s_t}, {s_Og}')
        for k in range(i, i + gs):
            e(f'buffer_load_dwordx4 {vr(OF(k),4)}, v{vLX}, {WS}, {s_t} offen offset:{(k%4)*1024} sc1')
    g_load = f'buffer_load_dword v{vGv}, v{vGo2}, {WS}, {s_Gg} offen sc1'
    NA = oahead * 4
    for i in range(NA): o_load(i)
    while zq: e(zq.pop(0))
    while rdq: e(rdq.pop(0))
    e.wait_tag('wo7')
    e('s_barrier')
    for gI in range(n_mid, 8): rdq += wo_read_ops(gI)
    while rdq: e(rdq.pop(0))
    e.wait(lg=0)
    def check_ops(g):
        b = OF(g*gs); nr = gs * 4
        ops = [f'v_max3_u32 v{T}, v{b}, v{b+1}, v{b+2}']
        for q in range(3, nr - 1, 2):
            ops.append(f'v_max3_u32 v{T}, v{T}, v{b+q}, v{b+q+1}')
        ops.append(f'v_max_u32 v{T}, v{T}, v{b+nr-1}')
        ops.append(f'v_cmp_eq_u32 vcc, -1, v{T}')
        return ops
    def grp_mfs(g, last=False):
        r = []
        order = [(i, gm) for i in range(gs) for gm in (1, 0)]
        if last: order = [(i, 1) for i in range(gs)] + [(i, 0) for i in range(gs)]
        for i, gm in order:
            hi = g*gs + i
            r.append(f'v_mfma_f32_32x32x16_bf16 {vr(ACC+gm*16,16)}, {ar((hi*2+gm)*4,4)}, {vr(OF(hi),4)}, {vr(ACC+gm*16,16)}')
        return r
    gfin = [f'v_sub_f32 v44, 1.0, v{vGv}', f'v_cndmask_b32_e64 v44, v{vGv}, v44, {s_rhm}', 'v_mov_b32 v45, v44']
    fwr = [f'ds_write_b128 v{vFw}, {vr(ACC+16+q*4,4)} offset:{FSCR+q*1024}' for q in range(4)]
    for op in check_ops(0): e(op)
    for g in range(NG):
        lskip = e.label('L_osk'); lnext = e.label('L_onx')
        e(f's_cbranch_vccnz {lskip}')
        snap = e.snapshot()
        def side(g=g):
            lq = [lambda i=i: o_load(i) for i in range(g*gs + NA, min(32, (g+1)*gs + NA))]
            if g*gs + NA == 28: lq = [lambda: (e(g_load, tag='g'), o_load(28))] + lq[1:]
            ck = check_ops(g + 1) if g + 1 < NG else list(gfin)
            return lq, ck
        lq, ck = side()
        nm = 2 * gs
        for m, mf in enumerate(grp_mfs(g, g == NG - 1)):
            e(mf)
            if lq and (m < gs): lq.pop(0)()
            if g == NG - 1:
                while ck: e(ck.pop(0))
                if early_fin:
                    if gs == 4 and m >= 6:
                        for q in range(2*(m-6), 2*(m-6)+2): e(fwr[q])
                    elif gs < 4 and m == nm - 1:
                        for q in range(4): e(fwr[q])
            elif gs == 4:
                if m >= 5:
                    for _ in range(3):
                        if ck: e(ck.pop(0))
            elif m == nm - 2:
                while ck: e(ck.pop(0))
        assert not lq and not ck
        e.place(lnext)
        def oskip(g=g, lskip=lskip, lnext=lnext, snap=snap, side=side):
            e.restore(snap); e.hist = []
            e.place(lskip)
            e(f's_bitset1_b32 {s_mask}, {g}')
            lq, ck = side()
            for f in lq: f()
            for op in ck: e(op)
            e(f's_branch {lnext}')
        slow.append(oskip)
    lfix = e.label('L_ofix'); ldone = e.label('L_odone')
    e(f's_cmp_lg_u32 {s_mask}, 0\n s_cbranch_scc1 {lfix}')
    e.place(ldone)
    def ofix():
        e.place(lfix)
        e(f"""
        s_add_u32 {s_spin}, {s_spin}, 0x100
        s_cmp_gt_u32 {s_spin}, {MAXSPIN*256}
        s_cbranch_scc1 {ldone}
        """)
        for g in range(NG):
            l = e.label('L_fl')
            e(f's_bitcmp0_b32 {s_mask}, {g}\n s_cbranch_scc1 {l}')
            o_reload(g)
            e.place(l)
        e('s_waitcnt vmcnt(0)')
        for g in range(NG):
            l = e.label('L_fm')
            e(f's_bitcmp0_b32 {s_mask}, {g}\n s_cbranch_scc1 {l}')
            for op in check_ops(g): e(op)
            e(f's_cbranch_vccnz {l}')
            e(f's_bitset0_b32 {s_mask}, {g}')
            for mf in grp_mfs(g): e(mf)
            e.place(l)
        e(f's_cmp_lg_u32 {s_mask}, 0\n s_cbranch_scc1 {lfix}\n s_nop 15')
        if early_fin:
            for q in range(4): e(fwr[q])
        e(f's_branch {ldone}')
    slow.append(ofix)
    stamp()
    if not early_fin:
        for q in range(4):
            e(f'ds_write_b128 v{vFw}, {vr(ACC+16+q*4,4)} offset:{FSCR+q*1024}')
    e('s_waitcnt lgkmcnt(0)')
    e('s_barrier')
    OT = 48
    for q in range(4):
        e(f'ds_read_b128 {vr(OT+q*4,4)}, v46 offset:{FSCR+q*1024}')
    for p in range(2):
        for i in range(p*8, p*8+8, 2):
            e(f'v_pk_add_f32 {vr(ACC+i,2)}, {vr(ACC+i,2)}, {vr(OT+i,2)} neg_lo:[0,1] neg_hi:[0,1]')
            e(f'v_pk_fma_f32 {vr(ACC+i,2)}, {vr(ACC+i,2)}, v[44:45], {vr(OT+i,2)}')
            e(f'v_cvt_pk_bf16_f32 v{T+i//2}, v{ACC+i}, v{ACC+i+1}')
        e(f'v_permlane32_swap_b32 v{T+p*4}, v{T+p*4+2}')
        e(f'v_permlane32_swap_b32 v{T+p*4+1}, v{T+p*4+3}')
        if x_full:
            if p == 0:
                e(f'v_lshrrev_b32 v47, 7, v{vL16}\n v_lshlrev_b32 v47, 10, v47\n v_and_b32 v30, 127, v{vL16}\n v_add_u32 v47, v47, v30\n s_lshl_b32 {s_t}, {rh}, 6\n s_sub_u32 {s_out}, {s_out}, {s_t}\n s_lshl_b32 {s_t}, {rh}, 14\n s_add_u32 {s_out}, {s_out}, {s_t}')
            else:
                e(f's_add_u32 {s_out}, {s_out}, 8192')
            e(f'buffer_store_dwordx4 {vr(T+p*4,4)}, v47, {OUT}, {s_out} offen {out_mod}')
        else:
            e(f'buffer_store_dwordx4 {vr(T+p*4,4)}, v{vOut}, {OUT}, {s_out} offen offset:{32*p} {out_mod}')
    stamp()
    if amp >= 0:
        e('s_waitcnt vmcnt(0)')
        stamp()
        e(f'''
        s_memrealtime s[60:61]
        s_waitcnt lgkmcnt(0)
        s_sub_u32 s57, s{70+2*amp}, s70
        s_mul_i32 s57, s57, 10
        s_min_u32 s57, s57, 100000
        s_add_u32 s57, s57, s60
        L_amp:
        s_memrealtime s[60:61]
        s_waitcnt lgkmcnt(0)
        s_sub_u32 s58, s60, s57
        s_cmp_lt_i32 s58, 0
        s_cbranch_scc1 L_amp
        ''')
    elif stamps:
        e('s_waitcnt vmcnt(0)')
        stamp()
        e(f'''
        s_waitcnt lgkmcnt(0)
        s_cmp_lg_u32 s3, {stamps-1}
        s_cbranch_scc1 L_end
        s_add_u32 s4, s4, {STAMP_OFF}
        s_addc_u32 s5, s5, 0
        s_lshl_b32 s57, s2, 7
        v_mov_b32 v10, s57
        ''')
        for s in range(16):
            if s >= nst[0]:
                e(f'v_mov_b32 v12, {s_spin}\n v_mov_b32 v13, 0')
            else:
                e(f'v_mov_b32 v12, s{70+2*s}\n v_mov_b32 v13, s{71+2*s}')
            e(f'global_store_dwordx2 v10, v[12:13], s[4:5] offset:{8*s}')
            e('s_nop 1')
    e('L_end:')
    e('s_endpgm')
    for s in slow:
        e.hist = []; e.vm = []; e.lg = []
        s()
    e.raw('.p2align 8\n.fill 4608, 4, 0xbf810000')
    print('instr counts', e.count, 'nops', e.nops, 'stamps', nst[0], 't0 at', t0[0], 'early', n_early, 'mid', n_mid, 'phi', nphi, 'late', nlate, file=sys.stderr)
    txt = e.text()
    if al:
        from align import align
        txt, nc, nn = align(txt, al)
        print('aligned: conv', nc, 'nops', nn, file=sys.stderr)
    return kernel_file(txt, 256, 256, 163840, vgpr=512, accum=256, pad=pad)

def multi(prefix, variants, base, g=None):
    names = []
    for nm, kw in variants:
        fn = f'mb/{prefix}_{nm}.s'
        d = dict(base); d.update(kw)
        open('code/' + fn, 'w').write((g or gen)(**d))
        names.append(fn)
    print(' '.join(names)); print(str(names).replace("'", '"'))

if __name__ == '__main__':
    open('cdna_kernels/' + NAME + '.s', 'w').write(gen())
    multi('k10', [('a', {}), ('pf1', dict(pf3=1)), ('pf2', dict(pf3=2))], dict(stamps=1))
```
